```python
import torch

def _softmax(x, axis=-1):
    return torch.softmax(x, dim=axis)
def _gelu(x):
    return torch.nn.functional.gelu(x, approximate="tanh")
def _silu(x):
    return torch.nn.functional.silu(x)
def _sigmoid(x):
    return torch.sigmoid(x)
def _layernorm(x, axis=-1, eps=1e-5):
    m = x.mean(dim=axis, keepdim=True)
    v = x.var(dim=axis, keepdim=True, unbiased=False)
    return (x - m) / torch.sqrt(v + eps)
def _scatter_add(tgt, idx, src, axis=0):
    return tgt.clone().index_add_(axis, idx, src)
def _segment_sum(src, seg, n):
    out = torch.zeros((n,) + src.shape[1:], dtype=src.dtype)
    return out.index_add_(0, seg, src)
def _pad(x, pw):
    flat = tuple(v for pair in reversed(pw) for v in pair)
    return torch.nn.functional.pad(x, flat)

kernel_name = 'interleave_layers__ssm_conv_h3__ssm_conv_s4__prompt'

def setup_inputs():

    _w = (lambda a: (lambda t: t.to(torch.bfloat16) if t.is_floating_point() else t)(torch.as_tensor(a)))
    def _A_setup():
        B, S, D = 1, 2048, 512
        ks = 4
        return {
            "q": _w((lambda *s: torch.randn(*s, dtype=torch.bfloat16) * 0.05)(B, S, D)),
            "k": _w((lambda *s: torch.randn(*s, dtype=torch.bfloat16) * 0.4)(B, S, D)),
            "v": _w((lambda *s: torch.randn(*s, dtype=torch.bfloat16) * 0.4)(B, S, D)),
            "shift_k": _w((lambda *s: torch.randn(*s, dtype=torch.bfloat16) * 0.4)(D, ks) * 0.5),
            "ssm_k": _w((lambda *s: torch.randn(*s, dtype=torch.bfloat16) * 0.4)(D, S) * (1.0 / S ** 0.5)),
            "ssm_D": _w((lambda *s: torch.randn(*s, dtype=torch.bfloat16) * 0.4)(D)),
        }
    _A_in = _A_setup()

    def _B_setup():
        B, L, D, N = 1, 2048, 512, 128
        A_re = -(lambda _x: torch.exp(torch.as_tensor(_x)))((lambda *s: torch.randn(*s, dtype=torch.bfloat16) * 6.4)(D, N))
        A_im = torch.pi * (lambda *s: torch.randn(*s, dtype=torch.bfloat16) * 0.05)(D, N)
        B_re = (lambda *s: torch.randn(*s, dtype=torch.bfloat16) * 0.1)(D, N)
        B_im = (lambda *s: torch.randn(*s, dtype=torch.bfloat16) * 0.1)(D, N)
        C_re = (lambda *s: torch.randn(*s, dtype=torch.bfloat16) * 0.1)(D, N)
        C_im = (lambda *s: torch.randn(*s, dtype=torch.bfloat16) * 0.1)(D, N)
        log_dt = (lambda *s: torch.randn(*s, dtype=torch.bfloat16) * 0.05)(D) * 0.5 - 4.0
        Dskip = (lambda *s: torch.randn(*s, dtype=torch.bfloat16) * 0.05)(D)
        return {
            "u": _w((lambda *s: torch.randn(*s, dtype=torch.bfloat16) * 0.05)(B, L, D)),
            "A_re": _w(A_re),
            "A_im": _w(A_im),
            "B_re": _w(B_re),
            "B_im": _w(B_im),
            "C_re": _w(C_re),
            "C_im": _w(C_im),
            "log_dt": _w(log_dt),
            "Dskip": _w(Dskip),
        }
    _B_in = _B_setup()

    return {
        "A_q": _A_in["q"],
        "A_k": _A_in["k"],
        "A_v": _A_in["v"],
        "A_shift_k": _A_in["shift_k"],
        "A_ssm_k": _A_in["ssm_k"],
        "A_ssm_D": _A_in["ssm_D"],
        "B_u": _B_in["u"],
        "B_A_re": _B_in["A_re"],
        "B_A_im": _B_in["A_im"],
        "B_B_re": _B_in["B_re"],
        "B_B_im": _B_in["B_im"],
        "B_C_re": _B_in["C_re"],
        "B_C_im": _B_in["C_im"],
        "B_log_dt": _B_in["log_dt"],
        "B_Dskip": _B_in["Dskip"],
    }

def reference(A_q, A_k, A_v, A_shift_k, A_ssm_k, A_ssm_D, B_u, B_A_re, B_A_im, B_B_re, B_B_im, B_C_re, B_C_im, B_log_dt, B_Dskip):
    def _A_ref(q, k, v, shift_k, ssm_k, ssm_D):
        B, S, D = q.shape
        ks = shift_k.shape[-1]
        k_pad = _pad(k, ((0, 0), (ks - 1, 0), (0, 0)))
        k_shift = torch.zeros_like(k)
        for t in range(ks):
            k_shift = k_shift + k_pad[:, t:t + S, :] * shift_k[:, ks - 1 - t][None, None, :]
        kv = k_shift * v
        L = 2 * S
        kv_pad = _pad(kv, ((0, 0), (0, S), (0, 0)))
        kf_pad = _pad(ssm_k, ((0, 0), (0, S)))
        kv_f = (lambda x, axes=(-2,-1): torch.fft.rfft2(x.float(), dim=axes))(kv_pad[:, None, :, :], axes=(1, 2))
        kf_f = (lambda x, axes=(-2,-1): torch.fft.rfft2(x.float(), dim=axes))(kf_pad[:, None, :], axes=(1, 2))
        kf_f = (lambda x, *d: x.permute(*d))(kf_f, 1, 2, 0)
        y_f = kv_f * kf_f[None, :, :, :]
        y = (lambda x, s, axes=(-2,-1): torch.fft.irfft2(x, s=s, dim=axes).to(torch.bfloat16))(y_f, (1, L), axes=(1, 2))[:, 0, :S, :]
        y = y + kv * ssm_D[None, None, :]
        return q * y

    def _B_ref(u, A_re, A_im, B_re, B_im, C_re, C_im, log_dt, Dskip):
        Bsz, L, D = u.shape
        dt = torch.exp(log_dt)[:, None]
        A = A_re + 1j * A_im
        Bc = B_re + 1j * B_im
        Cc = C_re + 1j * C_im
        logdA = dt * A
        dB = dt * Bc
        l = (lambda x, dt: x.to(dt))(torch.arange(L), A_re.dtype)
        P = torch.exp(logdA[:, :, None] * l[None, None, :])
        K = torch.einsum("dn,dnl,dn->dl", Cc, P, dB).real
        L2 = 2 * L
        Kp = _pad(K, ((0, 0), (0, L)))
        up = (lambda x, *d: x.permute(*d))(u, 0, 2, 1)
        up = _pad(up, ((0, 0), (0, 0), (0, L)))
        Kf = (lambda x, axes=(-2,-1): torch.fft.rfft2(x.float(), dim=axes))(Kp[:, None, :], axes=(-2, -1))
        Uf = (lambda x, axes=(-2,-1): torch.fft.rfft2(x.float(), dim=axes))(up[:, :, None, :], axes=(-2, -1))
        Yf = Uf * Kf[None, :, :, :]
        y = (lambda x, s, axes=(-2,-1): torch.fft.irfft2(x, s=s, dim=axes).to(torch.bfloat16))(Yf, (1, L2), axes=(-2, -1))[:, :, 0, :L]
        y = (lambda x, *d: x.permute(*d))(y, 0, 2, 1) + u * Dskip[None, None, :]
        return y

    x = A_q
    x = x + _A_ref(_layernorm(x, axis=-1), A_k, A_v, A_shift_k, A_ssm_k, A_ssm_D)
    x = x + _B_ref(_layernorm(x, axis=-1), B_A_re, B_A_im, B_B_re, B_B_im, B_C_re, B_C_im, B_log_dt, B_Dskip)
    x = x + _A_ref(_layernorm(x, axis=-1), A_k, A_v, A_shift_k, A_ssm_k, A_ssm_D)
    x = x + _B_ref(_layernorm(x, axis=-1), B_A_re, B_A_im, B_B_re, B_B_im, B_C_re, B_C_im, B_log_dt, B_Dskip)
    return x
```

```python
import re

class Ins:
    __slots__ = ("text", "op", "dst", "src", "label", "target", "kind", "sdst", "ssrc", "isdpp", "extra")
    def __init__(self, text):
        self.text = text; self.label = None; self.target = None
        self.op = None; self.dst = set(); self.src = set(); self.sdst = set(); self.ssrc = set()
        self.isdpp = False; self.extra = {}

_reg = re.compile(r"^(-|abs\(|\|)?([vas])(\d+)\)?\|?$")
_rng = re.compile(r"^(-)?([vas])\[(\d+):(\d+)\]$")
def regs_of(tok):
    tok = tok.strip()
    m = _reg.match(tok)
    if m: return {(m.group(2), int(m.group(3)))}
    m = _rng.match(tok)
    if m: return {(m.group(2), i) for i in range(int(m.group(3)), int(m.group(4)) + 1)}
    if tok in ("vcc", "vcc_lo", "vcc_hi"): return {("s", "vcc")}
    if tok in ("exec", "exec_lo", "exec_hi"): return {("s", "exec")}
    if tok == "m0": return {("s", "m0")}
    return set()

TRANS = ("v_exp_f32", "v_log_f32", "v_rcp_f32", "v_rsq_f32", "v_sqrt_f32", "v_sin_f32", "v_cos_f32")
def split_ops(s):
    out = []; depth = 0; cur = ""
    for ch in s:
        if ch == "[": depth += 1
        if ch == "]": depth -= 1
        if ch == "," and depth == 0: out.append(cur); cur = ""
        else: cur += ch
    out.append(cur)
    return out

def parse(text):
    ins = Ins(text)
    t = text.split(";")[0].strip()
    if not t: return ins
    if t.endswith(":"):
        ins.label = t[:-1]; return ins
    if t.startswith("."):
        ins.op = t; return ins
    parts = t.split(None, 1)
    op = parts[0]; ins.op = op
    rest = parts[1] if len(parts) > 1 else ""
    ops = split_ops(rest)
    toks = []
    for i, o in enumerate(ops):
        o = o.strip()
        if not o: continue
        toks.append(o.split()[0])
    base = re.sub(r"_(e32|e64|dpp|sdwa)$", "", op)
    ins.isdpp = op.endswith("_dpp")
    R = [regs_of(x) for x in toks]
    def V(s): return {r for r in s if r[0] in "va"}
    def S(s): return {r for r in s if r[0] == "s"}
    if op.startswith("s_cbranch") or op == "s_branch":
        ins.target = toks[0]
        if "vcc" in op: ins.ssrc.add(("s", "vcc"))
        return ins
    if op.startswith("s_"):
        if op in ("s_nop", "s_waitcnt", "s_barrier", "s_endpgm", "s_sleep", "s_setprio"): return ins
        if op == "s_setpc_b64": ins.ssrc |= R[0]; return ins
        if op == "s_call_b64": ins.sdst |= R[0]; ins.target = toks[1]; return ins
        if op.startswith("s_cmp"):
            for r in R: ins.ssrc |= r
            return ins
        ins.sdst |= R[0]
        for r in R[1:]: ins.ssrc |= r
        if "saveexec" in op: ins.sdst.add(("s", "exec"))
        return ins
    if op.startswith("ds_"):
        if base.startswith("ds_read") or base.startswith("ds_bpermute"):
            ins.dst |= R[0]
            for r in R[1:]: ins.src |= r
            if "d16" in op: ins.src |= R[0]
        else:
            for r in R: ins.src |= r
        if "addtid" in op: ins.extra["dma"] = True
        ins.extra["mem"] = "ds"
        return ins
    if op.startswith("buffer_") or op.startswith("global_"):
        ins.extra["mem"] = "vm"
        isload = "load" in op and " lds" not in (" " + rest) and "load_lds" not in op
        if op.startswith("buffer_inv") or op.startswith("buffer_wbl2"): return ins
        if isload:
            ins.dst |= R[0]
            for r in R[1:]: ins.src |= V(r); ins.ssrc |= S(r)
            if "d16" in op: ins.src |= R[0]
        else:
            for r in R: ins.src |= V(r); ins.ssrc |= S(r)
            if ("lds" in rest.split()) or "load_lds" in op: ins.ssrc.add(("s", "m0")); ins.extra["dma"] = True
            if "store" in op and ("x4" in op or "x3" in op):
                ins.extra["wide_store"] = (R[0] if op.startswith("buffer_") else R[1])
        return ins
    if op.startswith("v_"):
        ins.extra["valu"] = True
        if base.startswith("v_mfma"):
            ins.extra["mfma"] = 4 if "16x16x32" in op else 8 if "32x32x16" in op else 16
            ins.dst |= R[0]; ins.extra["A"] = R[1]; ins.extra["B"] = R[2]; ins.extra["C"] = R[3] if len(R) > 3 else set()
            ins.src |= R[1] | R[2] | ins.extra["C"]
            return ins
        if base.startswith("v_cmp"):
            ins.sdst |= R[0]
            if base.startswith("v_cmpx"): ins.sdst.add(("s", "exec"))
            for r in R[1:]: ins.src |= V(r); ins.ssrc |= S(r)
            return ins
        if base in ("v_readfirstlane_b32", "v_readlane_b32"):
            ins.sdst |= R[0]; ins.src |= V(R[1]); ins.extra["readlane"] = True
            for r in R[2:]: ins.ssrc |= S(r)
            return ins
        if base in ("v_permlane16_swap_b32", "v_permlane32_swap_b32"):
            ins.dst |= R[0] | R[1]; ins.src |= R[0] | R[1]; ins.extra["permlane"] = True
            return ins
        ins.dst |= V(R[0]); ins.sdst |= S(R[0])
        k = 1
        if base in ("v_add_co_u32", "v_sub_co_u32", "v_addc_co_u32", "v_subb_co_u32"):
            ins.sdst |= S(R[1]); k = 2
        for r in R[k:]: ins.src |= V(r); ins.ssrc |= S(r)
        if base in ("v_fmac_f32", "v_dot2c_f32_bf16", "v_writelane_b32") or ins.isdpp: ins.src |= V(R[0])
        if base == "v_cndmask_b32" and len(toks) == 3: ins.ssrc.add(("s", "vcc"))
        if base in TRANS: ins.extra["trans"] = True
        if base.startswith("v_dot2"): ins.extra["dot"] = base
        return ins
    raise ValueError("unparsed: " + text)

def need(p, c):
    n = 0
    pv = p.extra.get("valu"); cv = c.extra.get("valu")
    pm = p.extra.get("mfma"); cm = c.extra.get("mfma")
    if pm:
        if cm:
            if p.dst & c.extra["C"]:
                if not (p.dst == c.extra["C"] and pm == cm): n = max(n, pm + 2)
                elif pm == 2: n = max(n, 2)
            if p.dst & (c.extra["A"] | c.extra["B"]): n = max(n, pm + 4)
            if (p.dst & c.dst) and not (p.dst & c.extra["C"]): n = max(n, pm + 2)
        elif cv or c.extra.get("mem"):
            if p.dst & (c.src | c.dst): n = max(n, pm + 4)
        if cv and not cm and (p.extra["C"] & c.dst): n = max(n, pm - 1)
        return n
    if pv:
        if cm and (p.dst & c.src): n = max(n, 2)
        if cm and ("s", "exec") in p.sdst: n = max(n, 4)
        if c.isdpp and (p.dst & c.src): n = max(n, 2)
        if c.isdpp and ("s", "exec") in p.sdst: n = max(n, 5)
        if c.extra.get("permlane") and (p.dst & c.src): n = max(n, 2)
        if c.extra.get("readlane") and (p.dst & c.src): n = max(n, 1)
        if p.extra.get("trans") and cv and not c.extra.get("trans") and (p.dst & c.src): n = max(n, 1)
        if p.extra.get("dot") and (p.dst & (c.src | c.dst)):
            if c.extra.get("dot") == p.extra.get("dot"):
                n = max(n, 3)
            else: n = max(n, 3)
        if p.sdst:
            if cv and (p.sdst & c.ssrc): n = max(n, 4 if c.extra.get("readlane") or c.op.startswith("v_writelane") else 2)
            if c.extra.get("mem") == "vm" and (p.sdst & c.ssrc): n = max(n, 5)
            if c.op and c.op.startswith("s_") and (p.sdst & c.ssrc): n = max(n, 1)
            if ("s", "exec") in p.sdst and (c.extra.get("readlane") or c.extra.get("permlane")): n = max(n, 4)
        if "sdwa" in (p.op or "") and cv and (p.dst & (c.src | c.dst)): n = max(n, 1)
    if p.extra.get("wide_store") and (p.extra["wide_store"] & c.dst):
        n = max(n, 2 if cv else 1)
    if p.op and p.op.startswith("s_") and ("s", "m0") in p.sdst and c.extra.get("dma"): n = max(n, 1)
    if p.op and p.op.startswith("s_") and ("s", "exec") in p.sdst and c.isdpp: n = max(n, 0)
    return n

MAXW = 20
def states(ins):
    if ins.op is None or ins.op.startswith("."): return 0
    if ins.op == "s_nop": return int(ins.text.split()[1], 0) + 1
    return 1

def fix_hazards(lines):
    prog = [parse(l) for l in lines]
    n = len(prog)
    labels = {p.label: i for i, p in enumerate(prog) if p.label}
    preds = [[] for _ in prog]
    rets = [i for i, p in enumerate(prog) if p.op == "s_setpc_b64"]
    for i, p in enumerate(prog):
        if i + 1 < n and p.op not in ("s_branch", "s_endpgm", "s_setpc_b64", "s_call_b64"): preds[i + 1].append(i)
        if p.target: preds[labels[p.target]].append(i)
        if p.op == "s_call_b64":
            for r in rets: preds[i + 1].append(r)
    pad = [0] * n
    total = 0
    for i, c in enumerate(prog):
        if c.op is None or c.op.startswith(".") or c.op == "s_nop": continue
        worst = 0
        stack = [(j, 0) for j in preds[i]]
        seen = {}
        while stack:
            j, d = stack.pop()
            if d >= MAXW or seen.get(j, 99) <= d: continue
            seen[j] = d
            p = prog[j]
            if p.op is not None and not p.op.startswith("."):
                k = need(p, c) - d
                if k > worst: worst = k
            nd = d + states(p) + pad[j]
            for q in preds[j]: stack.append((q, nd))
        pad[i] = worst; total += worst
    out = []
    for i, p in enumerate(prog):
        w = pad[i]
        while w > 0:
            k = min(w, 16); out.append(f"    s_nop {k-1}"); w -= k
        out.append(p.text)
    return out, total

class Emit:
    def __init__(self): self.lines = []
    def __call__(self, s):
        for l in s.split("\n"):
            l = l.rstrip()
            if l.strip(): self.lines.append(l if l.strip().endswith(":") else "    " + l.strip())
    def label(self, n): self.lines.append(n + ":")
    def c(self, s): self.lines.append("    ; " + s)

import subprocess, tempfile, os
PROMO = ("v_mov_b32", "v_lshlrev_b32", "v_lshrrev_b32", "v_and_b32", "v_or_b32", "v_xor_b32", "v_add_f32", "v_mul_f32", "v_add_u32",
         "v_sub_u32", "v_max_f32", "v_max_u32", "v_cvt_f32_i32", "v_cvt_i32_f32", "v_exp_f32", "v_sin_f32", "v_cos_f32", "v_fract_f32",
         "v_sqrt_f32", "v_rcp_f32", "v_subrev_u32", "v_mul_u32_u24", "v_sub_f32", "v_max_i32", "v_min_u32", "v_fmac_f32")
def sizes(lines):
    d = tempfile.mkdtemp()
    s = os.path.join(d, "a.s"); o = os.path.join(d, "a.o")
    open(s, "w").write('.amdgcn_target "amdgcn-amd-amdhsa--gfx950"\n.text\n' + "\n".join(lines) + "\n")
    subprocess.run(["clang", "-x", "assembler", "-target", "amdgcn-amd-amdhsa", "-mcpu=gfx950", "-c", s, "-o", o], check=True)
    out = subprocess.run(["llvm-objdump", "-d", "--mcpu=gfx950", o], capture_output=True, text=True).stdout
    sz = []
    for l in out.splitlines():
        m = re.search(r"// ([0-9A-F]{12}): ((?:[0-9A-F]{8} ?)+)", l)
        if m: sz.append(4 * len(m.group(2).split()))
    return sz
def align_runs(lines, minrun=4):
    sz = sizes(lines)
    idx = [i for i, l in enumerate(lines) if not (l.strip().endswith(":") or l.strip().startswith(";") or l.strip().startswith("."))]
    assert len(idx) == len(sz), (len(idx), len(sz))
    out = list(lines); ins = {}
    off = 0; np_ = nn = 0
    for k, i in enumerate(idx):
        if sz[k] == 8 and off % 8 == 4 and (k == 0 or sz[k-1] == 4):
            run = 0
            while k + run < len(sz) and sz[k + run] == 8: run += 1
            op = lines[i].split()[0]
            if run >= minrun and not any(lines[idx[k+j]].split()[0].startswith("v_mfma") for j in range(run)):
                p = idx[k-1]; pop = out[p].split()[0]
                if pop in PROMO and p == i - 1:
                    out[p] = out[p].replace(pop, pop + "_e64", 1); np_ += 1; off += 4
                elif run >= minrun + 2:
                    ins[i] = True; nn += 1; off += 4
        off += sz[k]
    res = []
    for i, l in enumerate(out):
        if i in ins: res.append("    s_nop 0")
        res.append(l)
    return res, np_, nn
```

```python
import sys, argparse
from asmlib import Emit, fix_hazards, align_runs

NAME = "interleave_layers__ssm_conv_h3__ssm_conv_s4__prompt"
ap = argparse.ArgumentParser()
ap.add_argument("-o", default=f"cdna_kernels/{NAME}.s")
ap.add_argument("--stamps", type=int, default=0)
ap.add_argument("--sl_r_hi", type=int, default=10)
ap.add_argument("--sl_c_lo", type=int, default=8)
ap.add_argument("--echo", type=int, default=-1)
ap.add_argument("--align", type=int, default=1)
ap.add_argument("--outmod", default="")
ap.add_argument("--outdw", type=int, default=0)
ap.add_argument("--touch", type=int, default=1)
ap.add_argument("--s_early", type=int, default=0)
ap.add_argument("--hipoll", type=int, default=8)
ap.add_argument("--kg1pos", type=int, default=0)
ap.add_argument("--rsleep", type=int, default=1)
ap.add_argument("--kg1twice", type=int, default=0)
A = ap.parse_args()

e = Emit()
tail = Emit()
MB = 1 << 20
B1, B2, B3, B4, B5, B6 = [i * 2 * MB for i in range(6)]
STAMP_OFF = 12 * MB
WS_SIZE = 13 * MB
U_PH = 1280; U_C1 = 5248; U_CH = 10432
XB = 20864
RED = 26112
TS = 528; TBL_CH = 53 * TS; TA_OFF = 32 * TS
TBL = 26624
KC = 88400; KC_PH = 4160; KC_CH = 4 * KC_PH
ROWS = 121680; RS = 1088
ROW_K, ROW_V, ROW_Q = ROWS, ROWS + 12 * RS, ROWS + 20 * RS
KS = 152144; KS_CH = 5200
LDS_SIZE = 162560
GIDX = ROWS
sQ, sK, sV, sSH, sSSMK, sSSMD, sARE, sAIM, sBRE, sBIM, sCRE, sCIM, sLDT, sDSK, sOUT, sDBG, sWS = \
    16, 18, 20, 22, 24, 26, 30, 32, 34, 36, 38, 40, 42, 44, 46, 48, 50
sG, sT, sWV, sROLE = 3, 4, 5, 6
SELLO, SELHI, ONES = "s64", "s65", "s66"
sRSW = 67
sSPIN, sLN0 = 69, 70
sRRECV, sRPUB, sCRECV, sCPUB, sHALF, sTYPE = 72, 73, 74, 75, 76, 77
sT32, sT8K, sG32, sG8K = 78, 79, 80, 81
sTMP = 82
sINV = 83
sLAYER = 84
sBC = 16
def sp(n): return f"s[{n}:{n+1}]"
WSR = "s[12:15]"; DBR = "s[52:55]"; KSR = "s[8:11]"
vP16, vR0, vR1, vSTG, vUF, vKF, vXW, vXR, vRW, vRR, vPB = 1, 2, 3, 4, 5, 6, 7, 8, 9, 10, 11
XF, YA, AD, KD, P, T, T2, RC = 16, 32, 48, 64, 80, 88, 104, 120
DM = 128; vSTG2 = 130; vRT = 131
PRM = 132
RAW = 139
vSTAMP = 143
RC2 = 144
X = 148; XP = 156
UF = 164; NUF = 11
G = 208
S = 148
GI = 164; ET = 176; EX = 192
def v(n, k=1): return f"v{n}" if k == 1 else f"v[{n}:{n+k-1}]"
def a(n, k=1): return f"a{n}" if k == 1 else f"a[{n}:{n+k-1}]"

def stamp(i):
    if not A.stamps: return
    e(f"s_memrealtime s[86:87]\ns_waitcnt lgkmcnt(0)\nv_writelane_b32 v{vSTAMP}, s86, {i}")
def rstamp(base, reg, shift=0, extra=None):
    if not A.stamps: return
    e(f"s_memrealtime s[86:87]\ns_lshl_b32 m0, s{reg}, {shift}\ns_add_u32 m0, m0, {base}")
    if extra: e(f"s_add_u32 m0, m0, s{extra}")
    e(f"s_waitcnt lgkmcnt(0)\nv_writelane_b32 v{vSTAMP}, s86, m0")
uid = [0]
def L(n):
    uid[0] += 1
    return f"L_{n}_{uid[0]}"
def fill(buf, soff):
    e(f"s_add_u32 s{sTMP}, s{soff}, {buf}")
    e(f"buffer_store_dwordx4 v[12:15], v{vP16}, {WSR}, s{sTMP} offen sc1")
    e(f"buffer_store_dwordx4 v[12:15], v{vPB}, {WSR}, s{sTMP} offen sc1")
def setm1():
    for i in range(12, 16): e(f"v_mov_b32 v{i}, -1")
def r_issue(o=None):
    (o or e)(f"buffer_load_dwordx4 {v(RC,4)}, v{vR0}, {WSR}, s{sRRECV} offen sc1\nbuffer_load_dwordx4 {v(RC+4,4)}, v{vR1}, {WSR}, s{sRRECV} offen sc1")
def c_issue(o=None): (o or e)(f"buffer_load_dwordx4 {v(RC2,4)}, v{vR0}, {WSR}, s{sCRECV} offen sc1")
def poll_check(issue, regs, name, first_wait=0):
    top, retry, done = L(name + "_chk"), L(name + "_rt"), L(name + "_ok")
    e(f"s_waitcnt vmcnt({first_wait})")
    e.label(top)
    r = list(regs)
    e(f"v_max3_u32 v12, v{r[0]}, v{r[1]}, v{r[2]}")
    k = 3
    while k < len(r):
        if k + 1 < len(r): e(f"v_max3_u32 v12, v12, v{r[k]}, v{r[k+1]}"); k += 2
        else: e(f"v_max_u32 v12, v12, v{r[k]}"); k += 1
    e("v_cmp_eq_u32 vcc, -1, v12")
    e(f"s_cbranch_vccnz {retry}")
    e.label(done)
    tail.label(retry)
    tail(f"s_sub_u32 s{sSPIN}, s{sSPIN}, 1\ns_cbranch_scc1 {done}\ns_sleep {A.rsleep}\ns_mov_b64 exec, vcc")
    issue(tail)
    tail(f"s_mov_b64 exec, -1\ns_waitcnt vmcnt(0)\ns_branch {top}")
def dbg_check(reg, areg, target, name):
    top, retry, done = L(name + "_chk"), L(name + "_rt"), L(name + "_ok")
    e.label(top)
    e(f"v_cmp_gt_u32 vcc, {target}, v{reg}\ns_cbranch_vccnz {retry}")
    e.label(done)
    tail.label(retry)
    tail(f"s_sub_u32 s{sSPIN}, s{sSPIN}, 1\ns_cbranch_scc1 {done}\ns_sleep 4")
    tail(f"buffer_load_dword v{reg}, v{areg}, {DBR}, 0 offen sc1\ns_waitcnt vmcnt(0)\ns_branch {top}")
def arrive(base, o):
    o(f"""s_and_b32 s57, s2, 63
s_lshl_b32 s57, s57, 2
v_mov_b32 v12, 1
v_mov_b32 v13, {base}
s_mov_b64 exec, 1
buffer_atomic_add v12, v13, {DBR}, s57 offen sc1
s_mov_b64 exec, -1""")

def kg1_list():
    o = []
    wq = []
    cnt = [0]
    def w(s):
        for x in s.split("\n"):
            x = x.strip()
            if not x: continue
            o.append(x); cnt[0] += 1
            if len(wq) >= 6:
                o.extend(y[0] for y in wq); wq.clear()
    def cmul(d, x, y):
        w(f"v_pk_mul_f32 {v(d,2)}, {v(x,2)}, {v(y,2)} op_sel:[0,0] op_sel_hi:[1,0]")
        return f"v_pk_fma_f32 {v(d,2)}, {v(x,2)}, {v(y,2)}, {v(d,2)} op_sel:[1,1,0] op_sel_hi:[0,1,1] neg_lo:[1,0,0]"
    for i in range(7): w(f"v_lshlrev_b32 v{G+i}, 16, v{PRM+i}")
    w(f"""s_lshr_b32 s57, s{sWV}, 1
s_mul_i32 s57, s57, {TBL_CH}
s_lshl_b32 s58, s{sTYPE}, 8
s_add_u32 s57, s57, s58
s_add_u32 m0, s57, {TBL}
s_mov_b32 s57, 0x3fb8aa3b
s_mov_b32 s58, 0x32a57060
v_mul_f32 v{G+7}, s57, v{G+6}
v_fma_f32 v{G+8}, v{G+6}, s57, -v{G+7}
v_exp_f32 v{G+7}, v{G+7}
v_fma_f32 v{G+8}, v{G+6}, s58, v{G+8}
v_mul_f32 v{G+8}, 0x3f317218, v{G+8}
v_fma_f32 v{G+7}, v{G+7}, v{G+8}, v{G+7}
v_cvt_pk_bf16_f32 v{G+7}, v{G+7}, v{G+7}
v_and_b32 v{G+7}, 0xffff0000, v{G+7}
v_mov_b32 v{G+47}, 0x3f80
v_mul_f32 v{G}, v{G+7}, v{G}
v_mul_f32 v{G+1}, v{G+7}, v{G+1}
v_mul_f32 v{G+2}, v{G+7}, v{G+2}
v_mul_f32 v{G+3}, v{G+7}, v{G+3}
v_mul_f32 v{G}, s57, v{G}
v_mul_f32 v{G+1}, 0.15915494, v{G+1}""")
    AD_ = G + 46
    WW = G + 8
    f_ = cmul(WW, G+4, G+2)
    w(f"ds_write_addtid_b32 v{G+47}")
    w(f_)
    E1, E8, E128, E256, E2, E4 = G+10, G+12, G+14, G+16, G+18, G+20
    for (d, lit) in ((E1, "1.0"), (E8, "0x41000000"), (E128, "0x43000000"), (E256, "0x43800000")):
        w(f"v_mul_f32 v{d}, {lit}, v{G}\nv_mul_f32 v{d+1}, {lit}, v{G+1}")
    for d in (E1, E8, E128, E256): w(f"v_fract_f32 v{d+1}, v{d+1}\nv_exp_f32 v{d}, v{d}")
    for i, d in enumerate((E1, E8, E128, E256)): w(f"v_cos_f32 v{G+i}, v{d+1}\nv_sin_f32 v{d+1}, v{d+1}")
    for i, d in enumerate((E1, E8, E128, E256)): w(f"v_mul_f32 v{d+1}, v{d}, v{d+1}\nv_mul_f32 v{d}, v{d}, v{G+i}")
    pk = [G+i for i in range(8)]; pki = [0]
    def put(src, row, neg):
        r = pk[pki[0] % 8]; pki[0] += 1
        assert len(wq) < 8
        w(f"v_cvt_pk_bf16_f32 v{r}, v{src}, {'-' if neg else ''}v{src+1}")
        wq.append((f"ds_write_addtid_b32 v{r} offset:{row*TS}", len(o)))
    f_ = cmul(E2, E1, E1)
    put(E8, 1, 0); w(f_)
    f_ = cmul(E4, E2, E2)
    put(E128, 16, 0); w(f_); put(WW, 32, 1)
    CA, CB, CC = G+22, G+26, G+30
    chainA = [(j, E8, 0) for j in range(2, 16)]
    chainB = [(j, E8, 0) for j in range(17, 32)]
    chainC = [(32+j, E1, 1) for j in range(1, 8)]
    rowD = {1: 8, 2: 12, 3: 14, 4: 16, 5: 17, 6: 18, 7: 19, 8: 20}
    cur = {"A": E8, "B": E128, "C": WW, "D": WW}
    slots = {"A": CA, "B": CB, "C": CC}
    dreg = {1: G+34, 2: G+36, 3: G+38, 4: G+40, 5: G+42, 6: G+40, 7: G+42, 8: G+40}
    for s_ in range(15):
        pend = []
        for nm, ch in (("A", chainA), ("B", chainB), ("C", chainC)):
            if s_ < len(ch):
                d = slots[nm] + 2*(s_ & 1)
                pend.append((cmul(d, cur[nm], ch[s_][1]), d, ch[s_][0], ch[s_][2])); cur[nm] = d
        if s_ < 8:
            d = dreg[s_+1]
            pend.append((cmul(d, cur["D"], E256), d, 32 + rowD[s_+1], 1)); cur["D"] = d
        elif s_ < 13:
            d = CC + 2*(s_ & 1)
            src, mul, row = [(dreg[1], E2, 9), (None, E2, 10), (None, E2, 11), (dreg[2], E4, 13), (dreg[3], E4, 15)][s_-8]
            if src is None: src = CC + 2*((s_-1) & 1)
            pend.append((cmul(d, src, mul), d, 32 + row, 1))
        for p_ in pend: w(p_[0])
        for p_ in pend: put(p_[1], p_[2], p_[3])
    for x in wq: o.append(x[0])
    return o

e(f"s_cmp_ge_u32 s2, 256\ns_cbranch_scc1 L_exit")
e("s_load_dwordx16 s[16:31], s[0:1], 0\ns_load_dwordx16 s[32:47], s[0:1], 64\ns_load_dwordx4 s[48:51], s[0:1], 128")
if A.touch:
    e("s_lshr_b32 s7, s2, 3\ns_min_u32 s7, s7, 16\ns_lshl_b32 s7, s7, 3\ns_load_dwordx2 s[88:89], s[0:1], s7")
e("s_getpc_b64 s[56:57]")
e.label("L_pc")
e(f"""v_lshlrev_b32 v12, 7, v0
v_min_u32 v12, L_end-L_pc, v12
global_load_dword v{S+12}, v12, s[56:57]""")
nvm = 1
if A.stamps:
    e(f"v_mov_b32 v{vSTAMP}, 0")
    stamp(0)
    e(f"s_memtime s[86:87]\ns_waitcnt lgkmcnt(0)\nv_writelane_b32 v{vSTAMP}, s86, 32")
e(f"""s_and_b32 s7, s2, 7
s_lshr_b32 s56, s2, 3
s_lshl_b32 s{sG}, s7, 5
s_add_u32 s{sG}, s{sG}, s56
s_lshr_b32 s{sROLE}, s56, 4
s_lshl_b32 s{sT}, s{sROLE}, 7
s_lshl_b32 s7, s7, 4
s_add_u32 s{sT}, s{sT}, s7
s_and_b32 s56, s56, 15
s_add_u32 s{sT}, s{sT}, s56
s_lshl_b32 s{sT32}, s{sT}, 5
s_lshl_b32 s{sT8K}, s{sT}, 13
s_lshl_b32 s{sG32}, s{sG}, 5
s_lshl_b32 s{sG8K}, s{sG}, 13
v_lshrrev_b32 v12, 6, v0
v_lshlrev_b32 v{vP16}, 4, v0
v_readfirstlane_b32 s{sWV}, v12
v_add_u32 v{vPB}, 4096, v{vP16}
v_and_b32 v13, 63, v0
v_lshlrev_b32 v{S}, 4, v13
s_lshl_b32 s56, s{sWV}, 10
s_add_u32 s57, s56, s{sT8K}
s_sub_u32 s58, s57, 4096
v_add_u32 v{S+1}, s58, v{S}
v_add_u32 v{S+2}, s57, v{S}
s_mul_i32 s{sRSW}, s{sWV}, {RS}
v_add_u32 v{S+3}, 4096, v{S+2}
v_lshlrev_b32 v{S+4}, 3, v0
s_mov_b32 s14, {WS_SIZE}
s_mov_b32 s15, 0x00020000
s_mov_b32 s10, {2*MB}
s_mov_b32 s11, 0x00020000
s_add_u32 m0, s{sRSW}, {ROW_K}""")
setm1()
e("s_waitcnt lgkmcnt(0)")
e(f"""s_mov_b32 s12, s{sWS}
s_mov_b32 s13, s{sWS+1}
s_mov_b32 s8, s{sK}
s_mov_b32 s9, s{sK+1}""")
fill(B1, sT8K); nvm += 2; n_b1 = nvm
SHR = S + 8
e(f"""buffer_load_dwordx4 v{S+1}, {KSR}, 0 offen lds
s_add_u32 m0, s{sRSW}, {ROW_K + 4*RS}
s_nop 0
buffer_load_dwordx4 v{S+2}, {KSR}, 0 offen lds
s_add_u32 m0, s{sRSW}, {ROW_K + 8*RS}
s_nop 0
buffer_load_dwordx4 v{S+3}, {KSR}, 0 offen lds
s_add_u32 m0, s{sRSW}, {ROW_V}
s_nop 0
global_load_lds_dwordx4 v{S+2}, {sp(sV)}
s_add_u32 m0, s{sRSW}, {ROW_V + 4*RS}
s_nop 0
global_load_lds_dwordx4 v{S+3}, {sp(sV)}
global_load_dwordx2 {v(SHR,2)}, v{S+4}, {sp(sSH)}
global_load_dwordx2 {v(SHR+2,2)}, v{S+4}, {sp(sSH)} offset:2048""")
nvm += 7; n_kv = nvm
fill(B2, sG8K); nvm += 2; n_b2 = nvm
e(f"""v_add_u32 v{S+13}, s{sG8K}, v{vP16}
v_subrev_u32 v{S+14}, 8, v{vP16}
v_max_i32 v{S+14}, 0, v{S+14}
v_add_u32 v{S+14}, s{sG8K}, v{S+14}
v_add_u32 v{S+15}, 4096, v{S+13}
v_add_u32 v{S+4}, 4096, v{S+14}""")
def ssmk_load():
    e(f"""global_load_dwordx4 {v(EX+2,4)}, v{S+13}, {sp(sSSMK)}
global_load_dwordx2 {v(EX,2)}, v{S+14}, {sp(sSSMK)}
global_load_dwordx4 {v(EX+8,4)}, v{S+15}, {sp(sSSMK)}
global_load_dwordx2 {v(EX+6,2)}, v{S+4}, {sp(sSSMK)}""")
if A.s_early:
    ssmk_load(); nvm += 4
if A.touch: e("s_load_dword s90, s[88:89], 0")
e(f"""s_mov_b32 {SELLO}, 0x00003f80
s_mov_b32 {SELHI}, 0x3f800000
s_mov_b32 {ONES}, 0x3f803f80
s_mov_b32 s{sSPIN}, 0x20000
s_mov_b32 s{sINV}, 0x3b000000
s_and_b32 s{sTYPE}, s{sWV}, 1
s_mov_b32 s52, s{sDBG}
s_mov_b32 s53, s{sDBG+1}
s_mov_b32 s54, 256
s_mov_b32 s55, 0x00020000
v_lshlrev_b32 v{S+5}, 1, v0
s_lshl_b32 s56, s{sG}, 9
v_add_u32 v{S+6}, s56, v{S+5}
v_lshrrev_b32 v{S+7}, 7, v0
v_lshl_add_u32 v{S+7}, s{sG}, 1, v{S+7}
v_lshlrev_b32 v{S+7}, 1, v{S+7}
v_lshrrev_b32 v12, 1, v0
v_and_b32 v13, 1, v0
v_lshlrev_b32 v{vR0}, 13, v12
v_lshl_add_u32 v{vR0}, v13, 4, v{vR0}
v_add_u32 v{vR1}, {MB}, v{vR0}
v_mul_u32_u24 v{vSTG}, {U_CH}, v13
v_lshl_add_u32 v{vSTG}, v12, 2, v{vSTG}
v_add_u32 v{vSTG}, 128, v{vSTG}
v_add_u32 v{vSTG2}, {U_C1 + 8}, v{vSTG}
s_lshr_b32 s56, s{sWV}, 1
v_and_b32 v12, 15, v0
v_bfe_u32 v13, v0, 4, 2
s_mul_i32 s57, s56, {U_CH}
v_lshlrev_b32 v{vUF}, 3, v12
v_lshl_add_u32 v{vUF}, v13, 4, v{vUF}
s_add_u32 s57, s57, {8 + U_C1 + 8}
v_add_u32 v{vUF}, s57, v{vUF}
v_and_b32 v14, 1, v0
v_mul_u32_u24 v14, {U_C1 + 8}, v14
v_sub_u32 v{vUF}, v{vUF}, v14
v_and_b32 v14, 3, v0
v_bfe_u32 v15, v0, 2, 2
v_sub_u32 v14, v14, v15
v_lshlrev_b32 v14, 3, v14
v_lshlrev_b32 v15, 6, v13
v_sub_u32 v14, v14, v15
s_mul_i32 s57, s56, {KC_CH}
s_add_u32 s57, s57, {KC + 224}
v_add_u32 v{vKF}, s57, v14
v_and_b32 v14, 1, v13
s_lshl_b32 s57, s{sTYPE}, 1
s_sub_u32 s57, 3, s57
v_mul_u32_u24 v14, s57, v14
v_add_u32 v14, s{sTYPE}, v14
v_lshlrev_b32 v14, 5, v14
v_lshl_add_u32 v14, v12, 1, v14
v_lshrrev_b32 v15, 1, v13
v_add_u32 v14, v14, v15
v_lshrrev_b32 v15, 1, v14
v_lshlrev_b32 v14, 5, v14
v_lshl_add_u32 v14, v15, 4, v14
s_lshl_b32 s57, s56, 4
s_add_u32 s57, s57, {XB}
v_add_u32 v{vXW}, s57, v14
v_lshrrev_b32 v14, 2, v0
v_lshlrev_b32 v14, 4, v14
v_add_u32 v{vXR}, v14, v{vP16}
v_add_u32 v{vXR}, {XB}, v{vXR}
v_bfe_u32 v12, v0, 2, 1
v_bfe_u32 v13, v0, 4, 1
v_bfe_u32 v14, v0, 5, 1
v_lshlrev_b32 v12, 7, v12
v_lshl_add_u32 v12, v13, 6, v12
v_lshl_add_u32 v12, v14, 5, v12
v_bfe_u32 v13, v0, 3, 1
v_lshl_add_u32 v12, v13, 4, v12
s_lshl_b32 s57, s{sWV}, 2
s_add_u32 s57, s57, {RED}
v_add_u32 v{vRW}, s57, v12
v_and_b32 v12, 7, v0
v_lshlrev_b32 v12, 5, v12
v_add_u32 v{vRR}, {RED}, v12
v_bfe_u32 v12, v0, 2, 2
v_mul_u32_u24 v12, {RS}, v12
v_and_b32 v13, 3, v0
v_lshlrev_b32 v13, 3, v13
v_lshrrev_b32 v14, 4, v0
v_lshlrev_b32 v14, 5, v14
v_add3_u32 v{vRT}, v12, v13, v14
v_add_u32 v{vRT}, {ROWS}, v{vRT}""")
Z = T2
e(f"""v_mov_b32 v{Z}, 0
v_mov_b32 v{Z+1}, 0
v_mov_b32 v{Z+2}, 0
v_mov_b32 v{Z+3}, 0
v_bfe_u32 v12, v0, 4, 2
v_mul_u32_u24 v12, {U_PH}, v12
v_bfe_u32 v13, v0, 6, 1
v_mul_u32_u24 v13, {U_C1}, v13
v_lshrrev_b32 v14, 7, v0
v_mul_u32_u24 v14, {U_CH}, v14
v_add3_u32 v12, v12, v13, v14
v_and_b32 v14, 15, v0
v_lshl_add_u32 v12, v14, 4, v12
ds_write_b128 v12, {v(Z,4)}
v_bfe_u32 v12, v0, 1, 3
v_mul_u32_u24 v12, {KC_PH}, v12
v_and_b32 v13, 1, v0
v_lshl_add_u32 v12, v13, 4, v12
v_add_u32 v12, {KC}, v12
ds_write_b128 v12, {v(Z,4)}
v_mul_u32_u24 v13, {KS_CH}, v13
v_add_u32 v13, {KS}, v13
ds_write_b128 v13, {v(Z,4)}""")
e(f"v_lshlrev_b32 v12, 3, v0")
for i in range(12): e(f"v_add_u32 v{GI+i}, {i-4}, v12")
for i in range(12): e(f"v_cvt_f32_i32 v{GI+i}, v{GI+i}")
for i in range(6): e(f"v_cvt_pk_bf16_f32 v{P+i}, v{GI+2*i}, v{GI+2*i+1}")
for i in range(6): e(f"v_lshlrev_b32 v{GI+2*i}, 16, v{P+i}\nv_and_b32 v{GI+2*i+1}, 0xffff0000, v{P+i}")
for i in range(12): e(f"v_cvt_i32_f32 v{GI+i}, v{GI+i}")
e(f"s_mov_b32 s57, {KS + 16}")
for i in range(12): e(f"v_ashrrev_i32 v{KD+i}, 3, v{GI+i}")
for i in range(12): e(f"v_add_u32 v{GI+i}, v{GI+i}, v{KD+i}")
for i in range(12): e(f"v_lshl_add_u32 v{GI+i}, v{GI+i}, 1, s57")
wk = nvm - n_kv
e(f"s_waitcnt vmcnt({nvm-n_b1})\ns_barrier")
stamp(1)
e(f"s_cmp_eq_u32 s{sWV}, 0\ns_cbranch_scc1 L_arr1")
e(f"s_waitcnt vmcnt({wk})")
e.label("L_arr1_ret")
tail.label("L_arr1")
arrive(0, tail)
tail(f"s_waitcnt vmcnt({wk+1})\ns_branch L_arr1_ret")
if not A.s_early: ssmk_load()
e("s_barrier")
stamp(2)
KP = T
VP = P
SM = XF
W0 = YA; W1 = AD
for c in range(2):
    for b in range(3): e(f"ds_read_b64_tr_b16 {v(KP+6*c+2*b,2)}, v{vRT} offset:{ROW_K - ROWS + 4*b*RS + 512*c}")
for c in range(2):
    for b in range(2): e(f"ds_read_b64_tr_b16 {v(VP+4*c+2*b,2)}, v{vRT} offset:{ROW_V - ROWS + 4*b*RS + 512*c}")
e(f"s_mov_b32 s57, 0x03020504")
for c in range(2):
    r0, r1 = SHR + 2*c, SHR + 2*c + 1
    e(f"""v_alignbit_b32 v{SM+5*c}, v{r1}, v{r1}, 16
v_alignbit_b32 v{SM+5*c+1}, v{r0}, v{r0}, 16
v_and_b32 v{SM+5*c+2}, 0xffff0000, v{r1}
v_and_b32 v{SM+5*c+4}, 0xffff, v{r0}
v_perm_b32 v{SM+5*c+3}, v{r1}, v{r0}, s57""")
e("s_waitcnt lgkmcnt(4)" if not A.touch else "s_waitcnt lgkmcnt(0)")
for c in range(2):
    for t in range(8):
        if t & 1: e(f"v_dot2_f32_bf16 v{W0+8*c+t}, v{KP+6*c+(t+1)//2}, v{SM+5*c}, 0")
        else:     e(f"v_dot2_f32_bf16 v{W0+8*c+t}, v{KP+6*c+t//2}, v{SM+5*c+2}, 0")
for c in range(2):
    for t in range(8):
        if t & 1: e(f"v_dot2_f32_bf16 v{W0+8*c+t}, v{KP+6*c+(t+3)//2}, v{SM+5*c+1}, v{W0+8*c+t}")
        else:     e(f"v_dot2_f32_bf16 v{W0+8*c+t}, v{KP+6*c+t//2+1}, v{SM+5*c+3}, v{W0+8*c+t}")
e("s_waitcnt lgkmcnt(0)")
for c in range(2):
    for t in range(0, 8, 2):
        e(f"v_dot2_f32_bf16 v{W0+8*c+t}, v{KP+6*c+t//2+2}, v{SM+5*c+4}, v{W0+8*c+t}")
        e(f"v_lshlrev_b32 v{W1+8*c+t}, 16, v{VP+4*c+t//2}\nv_and_b32 v{W1+8*c+t+1}, 0xffff0000, v{VP+4*c+t//2}")
def t2(c, t): return T2 + 2*t + c
for c in range(2):
    for t in (1, 3, 5, 7, 0, 2, 4, 6): e(f"v_mul_f32 v{t2(c,t)}, v{W0+8*c+t}, v{W1+8*c+t}")
W = T
def pub(soff):
    for c in range(2):
        for f in range(4): e(f"v_cvt_pk_bf16_f32 v{W+4*c+f}, v{t2(c,f)}, v{t2(c,f+4)}")
        e(f"buffer_store_dwordx4 {v(W+4*c,4)}, v{vPB if c else vP16}, {WSR}, s{soff} offen sc1")
e(f"s_waitcnt vmcnt({4 if not A.s_early else nvm - n_b2})")
pub(sT8K)
stamp(21)
e(f"""s_add_u32 m0, s{sRSW}, {ROW_Q}
v_and_b32 v{S+1}, 63, v0
global_load_lds_dwordx4 v{S+2}, {sp(sQ)}
s_add_u32 m0, s{sRSW}, {ROW_Q + 4*RS}
v_lshlrev_b32 v{S+1}, 2, v{S+1}
global_load_lds_dwordx4 v{S+3}, {sp(sQ)}
global_load_ushort v{RAW+2}, v{S+5}, {sp(sSSMD)}
global_load_ushort v{RAW+3}, v{S+5}, {sp(sSSMD)} offset:512
global_load_ushort v{RAW}, v{S+5}, {sp(sDSK)}
global_load_ushort v{RAW+1}, v{S+5}, {sp(sDSK)} offset:512""")
for i, s_ in enumerate([sARE, sAIM, sBRE, sBIM, sCRE, sCIM]):
    e(f"global_load_ushort v{PRM+i}, v{S+6}, {sp(s_)}")
e(f"global_load_ushort v{PRM+6}, v{S+7}, {sp(sLDT)}")
e(f"s_waitcnt vmcnt(15)")
stamp(3)
e(f"""v_cmp_eq_u32 vcc, 0, v0
s_and_saveexec_b64 s[62:63], vcc
v_mov_b32 v{EX}, 0
v_mov_b32 v{EX+1}, 0
v_mov_b32 v{EX+6}, 0
v_mov_b32 v{EX+7}, 0
s_mov_b64 exec, s[62:63]""")
e("s_call_b64 s[60:61], L_expand")
stamp(28)
e("s_call_b64 s[60:61], L_kfrag")
lab = L("nodbg")
e(f"s_cmp_lg_u32 s{sWV}, 0\ns_cbranch_scc1 {lab}")
e(f"buffer_load_dword v{S}, v{S+1}, {DBR}, 0 offen sc1")
e.label(lab)
e(f"v_mul_u32_u24 v12, 48, v0\nv_add_u32 v12, {GIDX}, v12")
for i in range(3): e(f"ds_write_b128 v12, {v(GI+4*i,4)} offset:{16*i}")
def unpackW():
    for c in range(2):
        for f in range(4): e(f"v_lshlrev_b32 v{t2(c,f)}, 16, v{W+4*c+f}\nv_and_b32 v{t2(c,f+4)}, 0xffff0000, v{W+4*c+f}")
unpackW()
stamp(4)
e(f"s_waitcnt vmcnt(0)")
lab = L("nodbg2")
e(f"s_cmp_lg_u32 s{sWV}, 0\ns_cbranch_scc1 {lab}")
dbg_check(S, S+1, 4, "d1")
e.label(lab)
e(f"s_add_u32 s{sCRECV}, s{sG32}, {B1}\ns_add_u32 s{sCPUB}, s{sG8K}, {B2}")
e("s_barrier")
stamp(29)
c_issue()
setm1(); fill(B3, sT8K)
QP = KD
for c in range(2):
    for b in range(2): e(f"ds_read_b64_tr_b16 {v(QP+4*c+2*b,2)}, v{vRT} offset:{ROW_Q - ROWS + 4*b*RS + 512*c}")
e(f"s_mov_b32 s57, 0x05040100\ns_mov_b32 s58, 0x07060302\ns_mov_b32 s{sLN0}, 1")
e(f"v_lshlrev_b32 v{DM}, 16, v{RAW+2}\nv_lshlrev_b32 v{DM+1}, 16, v{RAW+3}")
e("s_waitcnt lgkmcnt(0)")
for t in range(8): e(f"v_perm_b32 v{P+t}, v{QP+4+t//2}, v{QP+t//2}, s{58 if t&1 else 57}")
for t in range(8): e(f"v_pk_mul_f32 {v(KD+2*t,2)}, {v(T2+2*t,2)}, {v(DM,2)}")
e(f"v_lshlrev_b32 v{DM}, 16, v{RAW}\nv_lshlrev_b32 v{DM+1}, 16, v{RAW+1}")
e("s_branch L_ln_r2")
def pack(src):
    for t in range(8): e(f"v_cvt_pk_bf16_f32 v{P+t}, v{src+2*t}, v{src+2*t+1}")
e.label("L_ln0post")
pack(T2)
for t in range(8): e(f"v_lshlrev_b32 v{T2+2*t}, 16, v{P+t}\nv_and_b32 v{T2+2*t+1}, 0xffff0000, v{P+t}")
for t in range(8): e(f"v_pk_fma_f32 {v(AD+2*t,2)}, {v(T2+2*t,2)}, {v(KD+2*t,2)}, {v(XF+2*t,2)}")
for t in range(8):
    for c in range(2):
        e(f"v_mov_b32 v{YA+2*t+c}, v{T2+2*t+c}" if t & 1 else f"v_lshrrev_b32 v{YA+2*t+c}, 16, v{T2+2*t+c}")
e(f"s_mov_b32 s{sLAYER}, 0\ns_mov_b32 s{sLN0}, 0")
e(f"s_add_u32 s{sRRECV}, s{sT32}, {B2}")
if A.kg1pos == 1:
    for x in kg1_list(): e(x)
stamp(5)

def stage(off):
    for r in (vSTG, vSTG2):
        e(f"ds_write2st64_b32 v{r}, v{RC2}, v{RC2+1} offset0:{off} offset1:{off+5}")
        e(f"ds_write2st64_b32 v{r}, v{RC2+2}, v{RC2+3} offset0:{off+10} offset1:{off+15}")
class Sched:
    def __init__(self): self.q = 0; self.last = {}; self.slot = 0; self.done = -1
    def lds(self, text, tag=None):
        e(text); self.q += 1
        if tag is not None: self.last[tag] = self.q
    def need(self, tag):
        k = self.last[tag]
        if k > self.done:
            n = min(15, self.q - k)
            e(f"s_waitcnt lgkmcnt({n})"); self.done = self.q - n
    def drained(self): self.done = self.q
def run_part(sc, items, ahead, hooks=None, group=2):
    hooks = dict(hooks or {})
    reg = {}; nxt = [0]
    def issue():
        if nxt[0] < len(items):
            f, d, _ = items[nxt[0]]
            r = UF + 4*(sc.slot % NUF); sc.slot += 1
            reg[nxt[0]] = r
            sc.lds(f"ds_read_b128 {v(r,4)}, v{vUF} offset:{f*U_PH + 64*(d+1)}", ("u", id(items), nxt[0]))
            nxt[0] += 1
    for _ in range(ahead): issue()
    m = 0
    for k, (f, d, ms) in enumerate(items):
        if k % group == 0 and k > 0: sc.need(("u", id(items), min(k + group - 1, nxt[0] - 1)))
        sc.need(("u", id(items), k))
        for j, (acc, c, z) in enumerate(ms):
            e(f"v_mfma_f32_16x16x32_bf16 {v(X+4*acc,4)}, {a((f*16+c)*4,4)}, {v(reg[k],4)}, {'0' if z else v(X+4*acc,4)}")
            if j == 0: issue()
            m += 1
            if m in hooks: hooks.pop(m)()
    assert not hooks, hooks

e.label("L_conv")
poll_check(c_issue, range(RC2, RC2+4), "c")
rstamp(6, sLAYER, 2)
stage(0)
for i in range(8): e(f"v_mov_b32 v{X+i}, 0")
e(f"s_mov_b32 s{sHALF}, 0\ns_add_u32 s{sCRECV}, s{sCRECV}, {MB}")
e("s_waitcnt lgkmcnt(0)\ns_barrier")
rstamp(36, sLAYER, 3)
e(f"s_cmp_lg_u32 s{sTYPE}, 0\ns_cbranch_scc1 L_p1_1")
for ty in range(2):
    Ra, Rb = ((0, 3), (1, 2))[ty]
    e.label(f"L_p1_{ty}")
    sc = Sched()
    items = [(f, d, [(1, 2*Rb - d, False)] + ([(0, 2*Ra - d, False)] if d <= 2*Ra else [])) for d in range(-1, 2*Rb+1) for f in range(4)]
    run_part(sc, items, 6)
    rstamp(37, sLAYER, 3, sHALF)
    e(f"""v_cvt_pk_bf16_f32 v{XP}, v{X}, v{X+1}
v_cvt_pk_bf16_f32 v{XP+1}, v{X+2}, v{X+3}
v_cvt_pk_bf16_f32 v{XP+2}, v{X+4}, v{X+5}
v_cvt_pk_bf16_f32 v{XP+3}, v{X+6}, v{X+7}
s_cmp_lg_u32 s{sHALF}, 0
v_permlane16_swap_b32 v{XP}, v{XP+2}
v_permlane16_swap_b32 v{XP+1}, v{XP+3}""")
    sc = Sched()
    sc.lds(f"ds_write_b128 v{vXW}, {v(XP,4)}", "xw")
    e("s_cbranch_scc1 L_ctail")
    items = [(f, d, [(0, 2*(Ra+4) - d, d == -1 and f == 0), (1, 2*(Rb+4) - d, d == -1 and f == 0)]) for d in range(-1, 7) for f in range(4)]
    def h1():
        sc.need("xw"); e("s_barrier"); sc.lds(f"ds_read_b128 {v(XP+4,4)}, v{vXR}", "xr")
    def h2():
        sc.need("xr"); e(f"buffer_store_dwordx4 {v(XP+4,4)}, v{vP16}, {WSR}, s{sCPUB} offen sc1")
        if A.stamps: rstamp(39, sLAYER, 3); sc.drained()
    def h3():
        c_issue()
    def h4():
        setm1()
    def h5():
        e(f"s_lshl_b32 s57, s{sLAYER}, 22\ns_add_u32 s58, s57, s{sG8K}")
        fill(B4, 58)
    run_part(sc, items, 4, {2: h1, 8: h2, 8 + A.hipoll: h3, 10 + A.hipoll: h4, 12 + A.hipoll: h5})
    rstamp(40, sLAYER, 3)
    poll_check(c_issue, range(RC2, RC2+4), f"h{ty}", 2)
    rstamp(41, sLAYER, 3)
    stage(2)
    lab2 = L("rhi")
    e(f"s_cmp_lg_u32 s{sROLE}, 0\ns_cbranch_scc1 {lab2}")
    r_issue()
    e.label(lab2)
    e(f"v_add_u32 v{vUF}, 512, v{vUF}\ns_mov_b32 s{sHALF}, 1\ns_add_u32 s{sCPUB}, s{sCPUB}, 4096")
    e("s_waitcnt lgkmcnt(0)\ns_barrier")
    rstamp(42, sLAYER, 3)
    e(f"s_branch L_p1_{ty}")
e.label("L_ctail")
e(f"""s_lshl_b32 s57, s{sLAYER}, 22
s_add_u32 s{sRPUB}, s57, s{sT8K}
s_add_u32 s{sRPUB}, s{sRPUB}, {B3}
s_add_u32 s{sCRECV}, s57, s{sG32}
s_add_u32 s{sCRECV}, s{sCRECV}, {B3}
s_waitcnt lgkmcnt(0)
s_barrier
ds_read_b128 {v(XP+4,4)}, v{vXR}
v_subrev_u32 v{vUF}, 512, v{vUF}
s_waitcnt lgkmcnt(0)
buffer_store_dwordx4 {v(XP+4,4)}, v{vP16}, {WSR}, s{sCPUB} offen sc1""")
rstamp(7, sLAYER, 2)
e(f"""s_add_u32 s{sCPUB}, s57, s{sG8K}
s_add_u32 s{sCPUB}, s{sCPUB}, {B4}
s_add_u32 s{sLAYER}, s{sLAYER}, 1
s_cmp_eq_u32 s{sLAYER}, 1
s_cbranch_scc1 L_s2""")
lab = L("nosl")
e(f"s_cmp_eq_u32 s{sROLE}, 0\ns_cbranch_scc1 {lab}")
e("s_call_b64 s[60:61], L_postpub")
e(f"s_sleep {A.sl_r_hi}")
r_issue()
e.label(lab)
e(f"s_cmp_eq_u32 s{sLAYER}, 3\ns_cbranch_scc1 L_r6")

def ln(hook=None, st=0):
    for t in range(8): e(f"v_dot2_f32_bf16 v{T+t}, v{P+t}, {ONES}, 0")
    for t in range(8): e(f"v_dot2_f32_bf16 v{T+8+t}, v{P+t}, v{P+t}, 0")
    for i in range(8): e(f"v_add_f32_dpp v{T+i}, v{T+i}, v{T+i} row_shl:8 row_mask:0xf bank_mask:0x3")
    for i in range(8): e(f"v_add_f32_dpp v{T+i}, v{T+8+i}, v{T+8+i} row_shr:8 row_mask:0xf bank_mask:0xc")
    for i in range(4): e(f"v_add_f32_dpp v{T+i}, v{T+i}, v{T+i} row_shl:4 row_mask:0xf bank_mask:0x5")
    for i in range(4): e(f"v_add_f32_dpp v{T+i}, v{T+4+i}, v{T+4+i} row_shr:4 row_mask:0xf bank_mask:0xa")
    unp = []
    for t in range(8):
        unp.append(f"v_lshlrev_b32 v{XF+2*t}, 16, v{P+t}")
        unp.append(f"v_and_b32 v{XF+2*t+1}, 0xffff0000, v{P+t}")
    def U(n):
        for _ in range(n):
            if unp: e(unp.pop(0))
    U(1)
    e(f"v_permlane16_swap_b32 v{T}, v{T+2}\nv_permlane16_swap_b32 v{T+1}, v{T+3}")
    e(f"v_add_f32 v{T}, v{T}, v{T+2}\nv_add_f32 v{T+1}, v{T+1}, v{T+3}")
    U(2)
    e(f"v_permlane32_swap_b32 v{T}, v{T+1}\nv_add_f32 v{T}, v{T}, v{T+1}")
    U(2)
    e(f"v_add_f32_dpp v{T}, v{T}, v{T} quad_perm:[1,0,3,2] row_mask:0xf bank_mask:0xf")
    U(2)
    e(f"v_add_f32_dpp v{T}, v{T}, v{T} quad_perm:[2,3,0,1] row_mask:0xf bank_mask:0xf")
    e(f"ds_write_b32 v{vRW}, v{T}")
    U(9)
    if hook: hook()
    if st: stamp(st)
    e(f"s_waitcnt lgkmcnt(0)\ns_barrier")
    if st: stamp(st+1)
    e(f"ds_read_b128 {v(T,4)}, v{vRR}\nds_read_b128 {v(T+4,4)}, v{vRR} offset:16")
    e(f"v_xor_b32 v{vRW}, 256, v{vRW}\nv_xor_b32 v{vRR}, 256, v{vRR}")
    e(f"""s_waitcnt lgkmcnt(1)
v_add_f32 v{T}, v{T}, v{T+1}
v_add_f32 v{T+2}, v{T+2}, v{T+3}
s_waitcnt lgkmcnt(0)
v_add_f32 v{T+4}, v{T+4}, v{T+5}
v_add_f32 v{T+6}, v{T+6}, v{T+7}
v_add_f32 v{T}, v{T}, v{T+2}
v_add_f32 v{T+4}, v{T+4}, v{T+6}
v_mul_f32 v{T}, s{sINV}, v{T}
v_mul_f32 v{T+4}, s{sINV}, v{T+4}
v_fma_f32 v{T+4}, -v{T}, v{T}, v{T+4}
v_max_f32 v{T+4}, 0, v{T+4}
v_cvt_pk_bf16_f32 v{T}, v{T}, v{T+4}
v_and_b32 v{T+4}, 0xffff0000, v{T}
v_lshlrev_b32 v12, 16, v{T}
v_add_f32 v{T+4}, 0x3727c5ac, v{T+4}
v_cvt_pk_bf16_f32 v{T+4}, v{T+4}, v{T+4}
v_and_b32 v{T+4}, 0xffff0000, v{T+4}
v_sqrt_f32 v{T+4}, v{T+4}
v_cvt_pk_bf16_f32 v{T+4}, v{T+4}, v{T+4}
v_and_b32 v{T+4}, 0xffff0000, v{T+4}
v_rcp_f32 v13, v{T+4}
v_mul_f32_e64 v12, -v12, v13""")
    if st: stamp(35)
    for t in range(8): e(f"v_readlane_b32 s{sBC+2*t}, v13, {t}\nv_readlane_b32 s{sBC+2*t+1}, v12, {t}")
    for t in range(8): e(f"v_pk_fma_f32 {v(T2+2*t,2)}, {v(XF+2*t,2)}, {sp(sBC+2*t)}, {sp(sBC+2*t)} op_sel:[0,0,1] op_sel_hi:[1,0,1]")
def hi_cpoll():
    lab = L("hc")
    e(f"s_cmp_eq_u32 s{sROLE}, 0\ns_cbranch_scc1 {lab}")
    c_issue()
    e.label(lab)
def addc():
    for t in range(8):
        for c in range(2): e(f"v_dot2_f32_bf16 v{T+2*t+c}, v{RC+4*c+t//2}, {SELHI if t&1 else SELLO}, v{AD+2*t+c}")
    pack(T)
poll_check(r_issue, range(RC, RC+8), "r4")
stamp(24)
addc()
stamp(8)
ln(st=62)
stamp(9)
for t in range(8): e(f"v_pk_fma_f32 {v(T+2*t,2)}, {v(T2+2*t,2)}, {v(YA+2*t,2)}, {v(XF+2*t,2)}")
pack(T)
ln(hi_cpoll)
pub(sRPUB)
stamp(25)
e(f"s_add_u32 s{sRRECV}, s{sRRECV}, {4*MB}")
e(f"s_cmp_lg_u32 s{sROLE}, 0\ns_cbranch_scc1 L_conv")
e("s_call_b64 s[60:61], L_postpub")
e(f"s_sleep {A.sl_c_lo}")
c_issue()
e("s_branch L_conv")

e.label("L_s2")
if A.kg1pos == 0:
    stamp(59)
    if A.kg1twice:
        e("s_mov_b32 s91, 0")
        e.label("L_kg1_again")
    for i_, x in enumerate(kg1_list()):
        e(x)
    if A.kg1twice:
        e(f"s_memrealtime s[86:87]\ns_add_u32 m0, s91, 60\ns_waitcnt lgkmcnt(0)\nv_writelane_b32 v{vSTAMP}, s86, m0")
        e("s_add_u32 s91, s91, 1\ns_cmp_lt_u32 s91, 2\ns_cbranch_scc1 L_kg1_again")
    stamp(18)
    e(f"s_cmp_eq_u32 s{sROLE}, 0\ns_cbranch_scc1 L_r2")
    r_issue()
    e("s_call_b64 s[60:61], L_kg2")
else:
    e(f"s_cmp_eq_u32 s{sROLE}, 0\ns_cbranch_scc1 L_r2")
    e("s_call_b64 s[60:61], L_kg2")
    r_issue()
    e("s_call_b64 s[60:61], L_kfrag")
e.label("L_r2")
poll_check(r_issue, range(RC, RC+8), "r2")
stamp(22)
for t in range(8):
    for c in range(2): e(f"v_dot2_f32_bf16 v{T+2*t+c}, v{RC+4*c+t//2}, v{YA+2*t+c}, v{AD+2*t+c}")
pack(T)
e.label("L_ln_r2")
ln()
e(f"s_cmp_lg_u32 s{sLN0}, 0\ns_cbranch_scc1 L_ln0post")
pub(sRPUB)
stamp(23)
hi_cpoll()
e(f"s_add_u32 s{sRRECV}, s{sRRECV}, {4*MB}")
setm1(); fill(B5, sT8K)
for t in range(8):
    for c in range(2): e(f"v_dot2_f32_bf16 v{YA+2*t+c}, v{RC+4*c+t//2}, {SELHI if t&1 else SELLO}, v{KD+2*t+c}")
lab = L("s3hi")
e(f"s_cmp_lg_u32 s{sROLE}, 0\ns_cbranch_scc1 {lab}")
e("s_call_b64 s[60:61], L_postpub")
e("s_call_b64 s[60:61], L_kg2")
c_issue()
if A.kg1pos == 1: e("s_call_b64 s[60:61], L_kfrag")
e.label(lab)
if A.kg1pos == 0: e("s_call_b64 s[60:61], L_kfrag")
stamp(19)
e("s_waitcnt lgkmcnt(0)\ns_branch L_conv")

e.label("L_postpub")
unpackW()
for t in range(8): e(f"v_pk_fma_f32 {v(AD+2*t,2)}, {v(T2+2*t,2)}, {v(DM,2)}, {v(XF+2*t,2)}")
e("s_setpc_b64 s[60:61]")

e.label("L_kg2")
e(f"""s_lshr_b32 s56, s{sWV}, 1
s_mul_i32 s57, s56, {TBL_CH}
s_add_u32 s57, s57, {TBL}
v_and_b32 v12, 15, v0
v_bfe_u32 v13, v0, 4, 2
v_mul_u32_u24 v14, {TS}, v12
v_lshl_add_u32 v14, v13, 4, v14
v_add_u32 v14, s57, v14
s_mul_i32 s58, s{sTYPE}, {16*TS}
v_add_u32 v15, s58, v14
s_waitcnt lgkmcnt(0)
s_barrier""")
GA, GB, GD = 148, 212, 244
SA = T
def kp(l): return 2 * (l + (l >> 3))
pre = f"""s_mul_i32 s57, s56, {KS_CH}
s_mul_i32 s58, s{sTYPE}, {16*18}
s_add_u32 s57, s57, s58
s_add_u32 s57, s57, {KS + 16}
v_mul_u32_u24 v12, 18, v12
v_add_u32 v12, s57, v12
v_cmp_eq_u32 vcc, 1, v13
v_cmp_eq_u32 s[62:63], 2, v13
v_mov_b32 v{SA+4}, {kp(256)}
v_mov_b32 v{SA+5}, {kp(512)}
v_cndmask_b32 v{SA}, 0, 8, vcc
v_cmp_eq_u32 vcc, 3, v13
v_cndmask_b32 v{SA}, v{SA}, v{SA+4}, s[62:63]
v_cndmask_b32 v{SA+1}, 2, 4, s[62:63]
v_cndmask_b32 v{SA+2}, 4, 8, s[62:63]
v_cndmask_b32 v{SA}, v{SA}, v{SA+5}, vcc
v_cndmask_b32 v{SA+1}, v{SA+1}, 8, vcc
v_cndmask_b32 v{SA+2}, v{SA+2}, v{SA+4}, vcc
v_add_u32 v{SA}, v{SA}, v12
v_add_u32 v{SA+3}, v{SA+1}, v{SA+2}
v_add_u32 v{SA+1}, v{SA+1}, v{SA}
v_add_u32 v{SA+2}, v{SA+2}, v{SA}
v_add_u32 v{SA+3}, v{SA+3}, v{SA}
v_mul_u32_u24 v{SA+4}, {kp(1024)}, v13
v_add_u32 v{SA+4}, v{SA+4}, v12
v_mul_u32_u24 v{SA+5}, 48, v0
v_add_u32 v{SA+5}, {GIDX}, v{SA+5}""".split("\n")
def kgrd(s_):
    e(f"ds_read_b128 {v(GB+4*s_,4)}, v15 offset:{64*s_}")
    e(f"ds_read_b128 {v(GA+8*s_,4)}, v14 offset:{TA_OFF + 64*s_}")
    e(f"ds_read_b128 {v(GA+8*s_+4,4)}, v14 offset:{TA_OFF + 16*TS + 64*s_}")
for s_ in range(4): kgrd(s_)
for x in pre: e(x)
for k in range(8):
    e(f"s_waitcnt lgkmcnt({min(9, 3*(7-k))})")
    for tl in range(2): e(f"v_mfma_f32_16x16x32_bf16 {v(GD+4*tl,4)}, {v(GA+8*k+4*tl,4)}, {v(GB+4*k,4)}, {'0' if k==0 else v(GD+4*tl,4)}")
    if k + 4 < 8: kgrd(k + 4)
GI2 = 148
for i in range(3): e(f"ds_read_b128 {v(GI2+4*i,4)}, v{SA+5} offset:{16*i}")
for i in range(4): e(f"v_cvt_pk_bf16_f32 v{GB+i}, v{GD+2*i}, v{GD+2*i+1}")
e(f"""ds_write_b16 v{SA}, v{GB}
ds_write_b16_d16_hi v{SA+1}, v{GB}
ds_write_b16 v{SA+2}, v{GB+1}
ds_write_b16_d16_hi v{SA+3}, v{GB+1}
s_mov_b32 exec_hi, 0
ds_write_b16 v{SA+4}, v{GB+2} offset:{kp(1024)}
s_mov_b32 exec_lo, 0xffff
ds_write_b16_d16_hi v{SA+4}, v{GB+2} offset:{kp(1280)}
ds_write_b16 v{SA+4}, v{GB+3} offset:{kp(1536)}
ds_write_b16_d16_hi v{SA+4}, v{GB+3} offset:{kp(1792)}
s_mov_b64 exec, -1""")
e("s_waitcnt lgkmcnt(0)\ns_barrier")
GV = 216
for c in range(2):
    for i in range(12): e(f"ds_read_u16 v{GV+12*c+i}, v{GI2+i} offset:{c*KS_CH}")
for c in range(2):
    e(f"s_waitcnt lgkmcnt({12 if c==0 else 0})")
    for i in range(6): e(f"v_lshl_or_b32 v{EX+6*c+i}, v{GV+12*c+2*i+1}, 16, v{GV+12*c+2*i}")
e.label("L_expand")
e(f"v_add_u32 v12, {KC + 32}, v{vP16}")
for c in range(2):
    E0 = EX + 6*c
    ETc = ET if c == 0 else G + 20
    e(f"ds_write_b128 v12, {v(E0+2,4)} offset:{c*KC_CH}")
    for i in range(4): e(f"v_alignbit_b32 v{ETc+i}, v{E0+2+i}, v{E0+1+i}, 16")
    e(f"ds_write_b128 v12, {v(ETc,4)} offset:{c*KC_CH + KC_PH}")
    for i in range(4): e(f"v_mov_b32 v{ETc+4+i}, v{E0+1+i}")
    e(f"ds_write_b128 v12, {v(ETc+4,4)} offset:{c*KC_CH + 2*KC_PH}")
    for i in range(4): e(f"v_alignbit_b32 v{ETc+8+i}, v{E0+1+i}, v{E0+i}, 16")
    e(f"ds_write_b128 v12, {v(ETc+8,4)} offset:{c*KC_CH + 3*KC_PH}")
e("s_setpc_b64 s[60:61]")
e.label("L_kfrag")
e("s_waitcnt lgkmcnt(0)\ns_barrier")
for c in range(16):
    if c == 14: e(f"s_cmp_lg_u32 s{sTYPE}, 0\ns_cbranch_scc1 L_kfrag_end")
    for f in range(4):
        for h in range(2):
            e(f"ds_read_b64_tr_b16 {a((f*16+c)*4+2*h,2)}, v{vKF} offset:{f*KC_PH + 256*c + 32*(1-h)}")
e.label("L_kfrag_end")
e("s_setpc_b64 s[60:61]")

e.label("L_r6")
e(f"""s_mov_b32 s8, s{sOUT}
s_mov_b32 s9, s{sOUT+1}
s_add_u32 s57, s{sT8K}, 4096""")
if A.outdw:
    e(f"""v_and_b32 v13, 1, v0
v_mul_u32_u24 v14, 510, v13
v_lshl_add_u32 v14, v0, 1, v14
v_mov_b32 v15, 0x05040100
v_mov_b32 v{T2}, 0x03020706
v_cmp_eq_u32 vcc, 1, v13
v_cndmask_b32 v15, v15, v{T2}, vcc""")
else:
    e("v_lshlrev_b32 v14, 1, v0")
poll_check(r_issue, range(RC, RC+8), "r6")
stamp(26)
addc()
if A.outdw:
    for t in range(8): e(f"v_mov_b32_dpp v{T2+t}, v{P+t} quad_perm:[1,0,3,2] row_mask:0xf bank_mask:0xf")
    for t in range(8):
        so = f"s{sT8K}" if t < 4 else "s57"
        e(f"v_perm_b32 v{T2+t}, v{T2+t}, v{P+t}, v15")
        e(f"buffer_store_dword v{T2+t}, v14, {KSR}, {so} offen offset:{(t&3)*1024} {A.outmod}")
else:
    for t in range(8):
        so = f"s{sT8K}" if t < 4 else "s57"
        e(f"buffer_store_short v{P+t}, v14, {KSR}, {so} offen offset:{(t&3)*1024} {A.outmod}")
        e(f"buffer_store_short_d16_hi v{P+t}, v14, {KSR}, {so} offen offset:{(t&3)*1024+512} {A.outmod}")
if A.stamps:
    stamp(30)
    e(f"""s_waitcnt vmcnt(0)""")
    stamp(31)
    e(f"s_memtime s[86:87]\ns_waitcnt lgkmcnt(0)\nv_writelane_b32 v{vSTAMP}, s86, 33")
    e(f"""s_lshl_b32 s57, s2, 10
s_add_u32 s57, s57, {STAMP_OFF}
v_lshlrev_b32 v12, 2, v0
buffer_store_dword v{vSTAMP}, v12, {WSR}, s57 offen""")
if A.echo >= 0:
    e(f"""v_readlane_b32 s57, v{vSTAMP}, 0
v_readlane_b32 s58, v{vSTAMP}, {A.echo}
v_readlane_b32 s59, v{vSTAMP}, 31
s_nop 3
s_sub_u32 s58, s58, s57
s_add_u32 s59, s59, s58""")
    e.label("L_echo")
    e("""s_memrealtime s[86:87]
s_waitcnt lgkmcnt(0)
s_sub_u32 s57, s86, s59
s_cmp_lt_i32 s57, 0
s_cbranch_scc1 L_echo""")
e.label("L_exit")
e("s_endpgm")
e.lines += tail.lines
e.label("L_end")
e("s_endpgm")

lines, nn = fix_hazards(e.lines)
if A.align:
    lines, np_, na = align_runs(lines)
hdr = open(f"cdna_kernels/{NAME}.s.ref").read().split("; @launch")[0]
out = hdr + f"; @launch grid=(256,1,1) block=(256,1,1) lds={LDS_SIZE}\n"
out += f""".amdgcn_target "amdgcn-amd-amdhsa--gfx950"
.text
.globl {NAME}_kernel
.p2align 8
.type {NAME}_kernel,@function
{NAME}_kernel:
""" + "\n".join(lines) + f"""
.section .rodata,"a"
.p2align 6
.amdhsa_kernel {NAME}_kernel
  .amdhsa_next_free_vgpr 512
  .amdhsa_next_free_sgpr 96
  .amdhsa_accum_offset 256
  .amdhsa_group_segment_fixed_size 0
  .amdhsa_kernarg_size 144
  .amdhsa_user_sgpr_count 2
  .amdhsa_user_sgpr_kernarg_segment_ptr 1
  .amdhsa_system_sgpr_workgroup_id_x 1
.end_amdhsa_kernel
"""
open(A.o, "w").write(out)
print(f"wrote {A.o}: {len(lines)} lines, {nn} nop states inserted", file=sys.stderr)
```

```python
import sys, argparse
from asmlib import Emit, fix_hazards, align_runs

NAME = "interleave_layers__ssm_conv_h3__ssm_conv_s4__prompt"
ap = argparse.ArgumentParser()
ap.add_argument("-o", default=f"cdna_kernels/{NAME}.s")
ap.add_argument("--stamps", type=int, default=0)
ap.add_argument("--sl_r_hi", type=int, default=14)
ap.add_argument("--sl_c_lo", type=int, default=12)
ap.add_argument("--echo", type=int, default=-1)
ap.add_argument("--align", type=int, default=1)
ap.add_argument("--outmod", default="")
ap.add_argument("--outdw", type=int, default=0)
ap.add_argument("--touch", type=int, default=1)
ap.add_argument("--s_early", type=int, default=0)
ap.add_argument("--hipoll", type=int, default=8)
ap.add_argument("--kg1pos", type=int, default=0)
ap.add_argument("--rsleep", type=int, default=1)
ap.add_argument("--kg1twice", type=int, default=0)
ap.add_argument("--kstream", type=int, default=1)
ap.add_argument("--kdist", type=int, default=1)
ap.add_argument("--bar2", type=int, default=0)
ap.add_argument("--diag_nog", type=int, default=0)
ap.add_argument("--faststats", type=int, default=1)
ap.add_argument("--rpos", type=int, default=16)
ap.add_argument("--cpos", type=int, default=0)
ap.add_argument("--gpos", type=int, default=52)
ap.add_argument("--spos", type=int, default=16)
ap.add_argument("--bpos", type=int, default=11)
ap.add_argument("--kstreamA", type=int, default=1)
ap.add_argument("--grp", type=int, default=2)
ap.add_argument("--fend", type=int, default=6)
ap.add_argument("--kgconv", type=int, default=0)
ap.add_argument("--kgr", type=int, default=200)
ap.add_argument("--shared", type=int, default=0)
ap.add_argument("--b3pos", type=int, default=0)
ap.add_argument("--fstep", type=int, default=6)
A = ap.parse_args()

e = Emit()
tail = Emit()
MB = 1 << 20
B1, B2, B3, B4, B5, B6 = [i * 2 * MB for i in range(6)]
STAMP_OFF = 12 * MB
WS_SIZE = 13 * MB
U_PH = 1280; U_C1 = 5248; U_CH = 10432
XB = 20864
RED = 26112
TS = 544; TBL_CH = 53 * TS; TA_OFF = 32 * TS
TBL = 26624
KC = 84288; KC_PH = 4160; KC_CH = 4 * KC_PH
ROWS = 117568; RS = 1088
ROW_K, ROW_V, ROW_Q = ROWS, ROWS + 12 * RS, ROWS + 20 * RS
KS = 148032; KS_CH = 5776
LDS_SIZE = 159744
GIDX = ROWS
sQ, sK, sV, sSH, sSSMK, sSSMD, sARE, sAIM, sBRE, sBIM, sCRE, sCIM, sLDT, sDSK, sOUT, sDBG, sWS = \
    16, 18, 20, 22, 24, 26, 30, 32, 34, 36, 38, 40, 42, 44, 46, 48, 50
sG, sT, sWV, sROLE = 3, 4, 5, 6
SELLO, SELHI, ONES = "s64", "s65", "s66"
sRSW = 67
sSPIN, sLN0 = 69, 70
sRRECV, sRPUB, sCRECV, sCPUB, sHALF, sTYPE = 72, 73, 74, 75, 76, 77
sT32, sT8K, sG32, sG8K = 78, 79, 80, 81
sTMP = 82
sINV = 83
sLAYER = 84
sBC = 16
def sp(n): return f"s[{n}:{n+1}]"
WSR = "s[12:15]"; DBR = "s[52:55]"; KSR = "s[8:11]"
vP16, vR0, vR1, vSTG, vUF, vKF, vXW, vXR, vRW, vRR, vPB = 1, 2, 3, 4, 5, 6, 7, 8, 9, 10, 11
XF, YA, AD, KD, P, T, T2, RC = 16, 32, 48, 64, 80, 88, 104, 120
DM = 128; vSTG2 = 130; vRT = 131
PRM = 132
RAW = 139
vSTAMP = 143
RC2 = 144
X = 148; XP = 156
UF = 164; NUF = 9
X2 = 200
G = 208
S = 148
GI = 164; ET = 176; EX = 192
def v(n, k=1): return f"v{n}" if k == 1 else f"v[{n}:{n+k-1}]"
def a(n, k=1): return f"a{n}" if k == 1 else f"a[{n}:{n+k-1}]"

def stamp(i):
    if not A.stamps or (A.stamps in (3, 5) and i not in (0, 31)) or (A.stamps == 4 and i not in (0, 2, 21, 4, 29, 18, 22, 23, 19, 24, 25, 26, 31)): return
    e(f"s_memrealtime s[86:87]\ns_waitcnt lgkmcnt(0)\nv_writelane_b32 v{vSTAMP}, s86, {i}")
def cstamp(base):
    if A.stamps != 4: return
    e(f"s_memtime s[86:87]\ns_lshl_b32 m0, s{sLAYER}, 1\ns_add_u32 m0, m0, {base}\ns_waitcnt lgkmcnt(0)\nv_writelane_b32 v{vSTAMP}, s86, m0")
def q(i):
    if A.stamps == 5: e(f"s_memtime s[{32+2*i}:{33+2*i}]")
def rstamp(base, reg, shift=0, extra=None):
    if not A.stamps or A.stamps in (3, 5) or (A.stamps == 4 and base not in (6, 7)): return
    e(f"s_memrealtime s[86:87]\ns_lshl_b32 m0, s{reg}, {shift}\ns_add_u32 m0, m0, {base}")
    if extra: e(f"s_add_u32 m0, m0, s{extra}")
    e(f"s_waitcnt lgkmcnt(0)\nv_writelane_b32 v{vSTAMP}, s86, m0")
uid = [0]
def L(n):
    uid[0] += 1
    return f"L_{n}_{uid[0]}"
def fill(buf, soff):
    e(f"s_add_u32 s{sTMP}, s{soff}, {buf}")
    e(f"buffer_store_dwordx4 v[12:15], v{vP16}, {WSR}, s{sTMP} offen sc1")
    e(f"buffer_store_dwordx4 v[12:15], v{vPB}, {WSR}, s{sTMP} offen sc1")
def setm1():
    for i in range(12, 16): e(f"v_mov_b32 v{i}, -1")
def r_issue(o=None):
    (o or e)(f"buffer_load_dwordx4 {v(RC,4)}, v{vR0}, {WSR}, s{sRRECV} offen sc1\nbuffer_load_dwordx4 {v(RC+4,4)}, v{vR1}, {WSR}, s{sRRECV} offen sc1")
def c_issue(o=None): (o or e)(f"buffer_load_dwordx4 {v(RC2,4)}, v{vR0}, {WSR}, s{sCRECV} offen sc1")
def poll_check(issue, regs, name, first_wait=0):
    top, retry, done = L(name + "_chk"), L(name + "_rt"), L(name + "_ok")
    e(f"s_waitcnt vmcnt({first_wait})")
    e.label(top)
    r = list(regs)
    e(f"v_max3_u32 v12, v{r[0]}, v{r[1]}, v{r[2]}")
    k = 3
    while k < len(r):
        if k + 1 < len(r): e(f"v_max3_u32 v12, v12, v{r[k]}, v{r[k+1]}"); k += 2
        else: e(f"v_max_u32 v12, v12, v{r[k]}"); k += 1
    e("v_cmp_eq_u32 vcc, -1, v12")
    e(f"s_cbranch_vccnz {retry}")
    e.label(done)
    tail.label(retry)
    if A.stamps:
        if name in ("c", "h0", "h1"):
            tail(f"s_lshl_b32 s57, s{sLAYER}, 2\ns_add_u32 s57, s57, {0 if name == 'c' else 12}\ns_lshl_b32 s57, 1, s57\ns_add_u32 s94, s94, s57")
        else:
            tail(f"s_add_u32 s95, s95, {1 << (8*{'r2':0,'r4':1,'r6':2}[name])}")
    tail(f"s_sub_u32 s{sSPIN}, s{sSPIN}, 1\ns_cbranch_scc1 {done}\ns_sleep {A.rsleep}\ns_mov_b64 exec, vcc")
    issue(tail)
    tail(f"s_mov_b64 exec, -1\ns_waitcnt vmcnt(0)\ns_branch {top}")
def poll_steps(issue, regs, name, first_wait):
    retry, done = L(name + "_rt"), L(name + "_ok")
    r = list(regs)
    chk = [f"v_max3_u32 v12, v{r[0]}, v{r[1]}, v{r[2]}", f"v_max_u32 v12, v12, v{r[3]}", "v_cmp_eq_u32 vcc, -1, v12"]
    tail.label(retry)
    if A.stamps: tail(f"s_lshl_b32 s57, s{sLAYER}, 2\ns_add_u32 s57, s57, 12\ns_lshl_b32 s57, 1, s57\ns_add_u32 s94, s94, s57")
    tail(f"s_sub_u32 s{sSPIN}, s{sSPIN}, 1\ns_cbranch_scc1 {done}\ns_sleep {A.rsleep}\ns_mov_b64 exec, vcc")
    issue(tail)
    tail("s_mov_b64 exec, -1\ns_waitcnt vmcnt(0)\n" + "\n".join(chk) + f"\ns_cbranch_vccnz {retry}\ns_branch {done}")
    def last(): e(f"s_cbranch_vccnz {retry}"); e.label(done)
    return [lambda: e(f"s_waitcnt vmcnt({first_wait})\n" + chk[0]), lambda: e(chk[1] + "\n" + chk[2]), last]
def dbg_check(reg, areg, target, name):
    top, retry, done = L(name + "_chk"), L(name + "_rt"), L(name + "_ok")
    e.label(top)
    e(f"v_cmp_gt_u32 vcc, {target}, v{reg}\ns_cbranch_vccnz {retry}")
    e.label(done)
    tail.label(retry)
    tail(f"s_sub_u32 s{sSPIN}, s{sSPIN}, 1\ns_cbranch_scc1 {done}\ns_sleep 4")
    tail(f"buffer_load_dword v{reg}, v{areg}, {DBR}, 0 offen sc1\ns_waitcnt vmcnt(0)\ns_branch {top}")
def arrive(base, o):
    o(f"""s_and_b32 s57, s2, 63
s_lshl_b32 s57, s57, 2
v_mov_b32 v12, 1
v_mov_b32 v13, {base}
s_mov_b64 exec, 1
buffer_atomic_add v12, v13, {DBR}, s57 offen sc1
s_mov_b64 exec, -1""")

def kg1_list():
    o = []
    wq = []
    cnt = [0]
    def w(s):
        for x in s.split("\n"):
            x = x.strip()
            if not x: continue
            o.append(x); cnt[0] += 1
            if len(wq) >= 6:
                o.extend(y[0] for y in wq); wq.clear()
    def cmul(d, x, y):
        w(f"v_pk_mul_f32 {v(d,2)}, {v(x,2)}, {v(y,2)} op_sel:[0,0] op_sel_hi:[1,0]")
        return f"v_pk_fma_f32 {v(d,2)}, {v(x,2)}, {v(y,2)}, {v(d,2)} op_sel:[1,1,0] op_sel_hi:[0,1,1] neg_lo:[1,0,0]"
    for i in range(7): w(f"v_lshlrev_b32 v{G+i}, 16, v{PRM+i}")
    w(f"""s_lshr_b32 s57, s{sWV}, 1
s_mul_i32 s57, s57, {TBL_CH}
s_lshl_b32 s58, s{sTYPE}, 8
s_add_u32 s57, s57, s58
s_add_u32 m0, s57, {TBL}
s_mov_b32 s57, 0x3fb8aa3b
s_mov_b32 s58, 0x32a57060
v_mul_f32 v{G+7}, s57, v{G+6}
v_fma_f32 v{G+8}, v{G+6}, s57, -v{G+7}
v_exp_f32 v{G+7}, v{G+7}
v_fma_f32 v{G+8}, v{G+6}, s58, v{G+8}
v_mul_f32 v{G+8}, 0x3f317218, v{G+8}
v_fma_f32 v{G+7}, v{G+7}, v{G+8}, v{G+7}
v_cvt_pk_bf16_f32 v{G+7}, v{G+7}, v{G+7}
v_and_b32 v{G+7}, 0xffff0000, v{G+7}
v_mov_b32 v{G+47}, 0x3f80
v_mul_f32 v{G}, v{G+7}, v{G}
v_mul_f32 v{G+1}, v{G+7}, v{G+1}
v_mul_f32 v{G+2}, v{G+7}, v{G+2}
v_mul_f32 v{G+3}, v{G+7}, v{G+3}
v_mul_f32 v{G}, s57, v{G}
v_mul_f32 v{G+1}, 0.15915494, v{G+1}""")
    AD_ = G + 46
    WW = G + 8
    f_ = cmul(WW, G+4, G+2)
    w(f"ds_write_addtid_b32 v{G+47}")
    w(f_)
    E1, E8, E128, E256, E2, E4 = G+10, G+12, G+14, G+16, G+18, G+20
    for (d, lit) in ((E1, "1.0"), (E8, "0x41000000"), (E128, "0x43000000"), (E256, "0x43800000")):
        w(f"v_mul_f32 v{d}, {lit}, v{G}\nv_mul_f32 v{d+1}, {lit}, v{G+1}")
    for d in (E1, E8, E128, E256): w(f"v_fract_f32 v{d+1}, v{d+1}\nv_exp_f32 v{d}, v{d}")
    for i, d in enumerate((E1, E8, E128, E256)): w(f"v_cos_f32 v{G+i}, v{d+1}\nv_sin_f32 v{d+1}, v{d+1}")
    for i, d in enumerate((E1, E8, E128, E256)): w(f"v_mul_f32 v{d+1}, v{d}, v{d+1}\nv_mul_f32 v{d}, v{d}, v{G+i}")
    pk = [G+i for i in range(8)]; pki = [0]
    def put(src, row, neg):
        r = pk[pki[0] % 8]; pki[0] += 1
        assert len(wq) < 8
        w(f"v_cvt_pk_bf16_f32 v{r}, v{src}, {'-' if neg else ''}v{src+1}")
        wq.append((f"ds_write_addtid_b32 v{r} offset:{row*TS}", len(o)))
    f_ = cmul(E2, E1, E1)
    put(E8, 1, 0); w(f_)
    f_ = cmul(E4, E2, E2)
    put(E128, 16, 0); w(f_); put(WW, 32, 1)
    CA, CB, CC = G+22, G+26, G+30
    chainA = [(j, E8, 0) for j in range(2, 16)]
    chainB = [(j, E8, 0) for j in range(17, 32)]
    chainC = [(32+j, E1, 1) for j in range(1, 8)]
    rowD = {1: 8, 2: 12, 3: 14, 4: 16, 5: 17, 6: 18, 7: 19, 8: 20}
    cur = {"A": E8, "B": E128, "C": WW, "D": WW}
    slots = {"A": CA, "B": CB, "C": CC}
    dreg = {1: G+34, 2: G+36, 3: G+38, 4: G+40, 5: G+42, 6: G+40, 7: G+42, 8: G+40}
    for s_ in range(15):
        pend = []
        for nm, ch in (("A", chainA), ("B", chainB), ("C", chainC)):
            if s_ < len(ch):
                d = slots[nm] + 2*(s_ & 1)
                pend.append((cmul(d, cur[nm], ch[s_][1]), d, ch[s_][0], ch[s_][2])); cur[nm] = d
        if s_ < 8:
            d = dreg[s_+1]
            pend.append((cmul(d, cur["D"], E256), d, 32 + rowD[s_+1], 1)); cur["D"] = d
        elif s_ < 13:
            d = CC + 2*(s_ & 1)
            src, mul, row = [(dreg[1], E2, 9), (None, E2, 10), (None, E2, 11), (dreg[2], E4, 13), (dreg[3], E4, 15)][s_-8]
            if src is None: src = CC + 2*((s_-1) & 1)
            pend.append((cmul(d, src, mul), d, 32 + row, 1))
        for p_ in pend: w(p_[0])
        for p_ in pend: put(p_[1], p_[2], p_[3])
    for x in wq: o.append(x[0])
    return o

e(f"s_cmp_ge_u32 s2, 256\ns_cbranch_scc1 L_exit")
e("s_load_dwordx16 s[16:31], s[0:1], 0\ns_load_dwordx16 s[32:47], s[0:1], 64\ns_load_dwordx4 s[48:51], s[0:1], 128")
if A.touch:
    e("s_lshr_b32 s7, s2, 3\ns_min_u32 s7, s7, 16\ns_lshl_b32 s7, s7, 3\ns_load_dwordx2 s[88:89], s[0:1], s7")
e("s_getpc_b64 s[56:57]")
e.label("L_pc")
e(f"""v_lshlrev_b32 v12, 7, v0
v_min_u32 v12, L_end-L_pc, v12
global_load_dword v{S+12}, v12, s[56:57]""")
nvm = 1
if A.stamps:
    e(f"v_mov_b32 v{vSTAMP}, 0\ns_mov_b32 s94, 0\ns_mov_b32 s95, 0")
    stamp(0)
    e(f"s_memtime s[86:87]\ns_waitcnt lgkmcnt(0)\nv_writelane_b32 v{vSTAMP}, s86, 32")
e(f"""s_and_b32 s7, s2, 7
s_lshr_b32 s56, s2, 3
s_lshl_b32 s{sG}, s7, 5
s_add_u32 s{sG}, s{sG}, s56
s_lshr_b32 s{sROLE}, s56, 4
s_lshl_b32 s{sT}, s{sROLE}, 7
s_lshl_b32 s7, s7, 4
s_add_u32 s{sT}, s{sT}, s7
s_and_b32 s56, s56, 15
s_add_u32 s{sT}, s{sT}, s56
s_lshl_b32 s{sT32}, s{sT}, 5
s_lshl_b32 s{sT8K}, s{sT}, 13
s_lshl_b32 s{sG32}, s{sG}, 5
s_lshl_b32 s{sG8K}, s{sG}, 13
v_lshrrev_b32 v12, 6, v0
v_lshlrev_b32 v{vP16}, 4, v0
v_readfirstlane_b32 s{sWV}, v12
v_add_u32 v{vPB}, 4096, v{vP16}
v_and_b32 v13, 63, v0
v_lshlrev_b32 v{S}, 4, v13
s_lshl_b32 s56, s{sWV}, 10
s_add_u32 s57, s56, s{sT8K}
s_sub_u32 s58, s57, 4096
v_add_u32 v{S+1}, s58, v{S}
v_add_u32 v{S+2}, s57, v{S}
s_mul_i32 s{sRSW}, s{sWV}, {RS}
v_add_u32 v{S+3}, 4096, v{S+2}
v_lshlrev_b32 v{S+4}, 3, v0
s_mov_b32 s14, {WS_SIZE}
s_mov_b32 s15, 0x00020000
s_mov_b32 s10, {2*MB}
s_mov_b32 s11, 0x00020000
v_lshlrev_b32 v{S+5}, 1, v0
s_lshl_b32 s56, s{sG}, 9
v_add_u32 v{S+6}, s56, v{S+5}
v_lshrrev_b32 v{S+7}, 7, v0
v_lshl_add_u32 v{S+7}, s{sG}, 1, v{S+7}
v_lshlrev_b32 v{S+7}, 1, v{S+7}
s_add_u32 m0, s{sRSW}, {ROW_K}""")
setm1()
e("s_waitcnt lgkmcnt(0)")
stamp(12)
e(f"""s_mov_b32 s12, s{sWS}
s_mov_b32 s13, s{sWS+1}
s_mov_b32 s8, s{sK}
s_mov_b32 s9, s{sK+1}""")
def params_load():
    for i, s_ in enumerate([sARE, sAIM, sBRE, sBIM, sCRE, sCIM]):
        e(f"global_load_ushort v{PRM+i}, v{S+6}, {sp(s_)}")
    e(f"global_load_ushort v{PRM+6}, v{S+7}, {sp(sLDT)}")
if A.kg1pos >= 2:
    params_load(); nvm += 7; n_prm = nvm
fill(B1, sT8K); nvm += 2; n_b1 = nvm
SHR = S + 8
e(f"""buffer_load_dwordx4 v{S+1}, {KSR}, 0 offen lds
s_add_u32 m0, s{sRSW}, {ROW_K + 4*RS}
s_nop 0
buffer_load_dwordx4 v{S+2}, {KSR}, 0 offen lds
s_add_u32 m0, s{sRSW}, {ROW_K + 8*RS}
s_nop 0
buffer_load_dwordx4 v{S+3}, {KSR}, 0 offen lds
s_add_u32 m0, s{sRSW}, {ROW_V}
s_nop 0
global_load_lds_dwordx4 v{S+2}, {sp(sV)}
s_add_u32 m0, s{sRSW}, {ROW_V + 4*RS}
s_nop 0
global_load_lds_dwordx4 v{S+3}, {sp(sV)}
global_load_dwordx2 {v(SHR,2)}, v{S+4}, {sp(sSH)}
global_load_dwordx2 {v(SHR+2,2)}, v{S+4}, {sp(sSH)} offset:2048""")
nvm += 7; n_kv = nvm
if not A.diag_nog: fill(B2, sG8K); nvm += 2
n_b2 = nvm
e(f"""v_add_u32 v{S+13}, s{sG8K}, v{vP16}
v_subrev_u32 v{S+14}, 8, v{vP16}
v_max_i32 v{S+14}, 0, v{S+14}
v_add_u32 v{S+14}, s{sG8K}, v{S+14}
v_add_u32 v{S+15}, 4096, v{S+13}
v_add_u32 v{S+4}, 4096, v{S+14}""")
def ssmk_load():
    e(f"""global_load_dwordx4 {v(EX+2,4)}, v{S+13}, {sp(sSSMK)}
global_load_dwordx2 {v(EX,2)}, v{S+14}, {sp(sSSMK)}
global_load_dwordx4 {v(EX+8,4)}, v{S+15}, {sp(sSSMK)}
global_load_dwordx2 {v(EX+6,2)}, v{S+4}, {sp(sSSMK)}""")
if A.s_early:
    ssmk_load(); nvm += 4
stamp(13)
if A.touch: e("s_load_dword s68, s[88:89], 0")
e(f"""s_mov_b32 {SELLO}, 0x00003f80
s_mov_b32 {SELHI}, 0x3f800000
s_mov_b32 {ONES}, 0x3f803f80
s_mov_b32 s{sSPIN}, 0x20000
s_mov_b32 s{sINV}, 0x3b000000
s_and_b32 s{sTYPE}, s{sWV}, 1
s_mov_b32 s52, s{sDBG}
s_mov_b32 s53, s{sDBG+1}
s_mov_b32 s54, 256
s_mov_b32 s55, 0x00020000
v_lshrrev_b32 v12, 1, v0
v_and_b32 v13, 1, v0
v_lshlrev_b32 v{vR0}, 13, v12
v_lshl_add_u32 v{vR0}, v13, 4, v{vR0}
v_add_u32 v{vR1}, {MB}, v{vR0}
v_mul_u32_u24 v{vSTG}, {U_CH}, v13
v_lshl_add_u32 v{vSTG}, v12, 2, v{vSTG}
v_add_u32 v{vSTG}, 128, v{vSTG}
v_add_u32 v{vSTG2}, {U_C1 + 8}, v{vSTG}
s_lshr_b32 s56, s{sWV}, 1
v_and_b32 v12, 15, v0
v_bfe_u32 v13, v0, 4, 2
s_mul_i32 s57, s56, {U_CH}
v_lshlrev_b32 v{vUF}, 3, v12
v_lshl_add_u32 v{vUF}, v13, 4, v{vUF}
s_add_u32 s57, s57, {8 + U_C1 + 8}
v_add_u32 v{vUF}, s57, v{vUF}
v_and_b32 v14, 1, v0
v_mul_u32_u24 v14, {U_C1 + 8}, v14
v_sub_u32 v{vUF}, v{vUF}, v14
v_and_b32 v14, 3, v0
v_bfe_u32 v15, v0, 2, 2
v_sub_u32 v14, v14, v15
v_lshlrev_b32 v14, 3, v14
v_lshlrev_b32 v15, 6, v13
v_sub_u32 v14, v14, v15
s_mul_i32 s57, s56, {KC_CH}
s_add_u32 s57, s57, {KC + 224}
v_add_u32 v{vKF}, s57, v14
v_and_b32 v14, 1, v13
s_lshl_b32 s57, s{sTYPE}, 1
s_sub_u32 s57, 3, s57
v_mul_u32_u24 v14, s57, v14
v_add_u32 v14, s{sTYPE}, v14
v_lshlrev_b32 v14, 5, v14
v_lshl_add_u32 v14, v12, 1, v14
v_lshrrev_b32 v15, 1, v13
v_add_u32 v14, v14, v15
v_lshrrev_b32 v15, 1, v14
v_lshlrev_b32 v14, 5, v14
v_lshl_add_u32 v14, v15, 4, v14
s_lshl_b32 s57, s56, 4
s_add_u32 s57, s57, {XB}
v_add_u32 v{vXW}, s57, v14
v_lshrrev_b32 v14, 2, v0
v_lshlrev_b32 v14, 4, v14
v_add_u32 v{vXR}, v14, v{vP16}
v_add_u32 v{vXR}, {XB}, v{vXR}
v_bfe_u32 v12, v0, 2, 1
v_bfe_u32 v13, v0, 4, 1
v_bfe_u32 v14, v0, 5, 1
v_lshlrev_b32 v12, 7, v12
v_lshl_add_u32 v12, v13, 6, v12
v_lshl_add_u32 v12, v14, 5, v12
v_bfe_u32 v13, v0, 3, 1
v_lshl_add_u32 v12, v13, 4, v12
s_lshl_b32 s57, s{sWV}, 2
s_add_u32 s57, s57, {RED}
v_add_u32 v{vRW}, s57, v12
v_and_b32 v12, 7, v0
v_lshlrev_b32 v12, 5, v12
v_add_u32 v{vRR}, {RED}, v12
v_bfe_u32 v12, v0, 2, 2
v_mul_u32_u24 v12, {RS}, v12
v_and_b32 v13, 3, v0
v_lshlrev_b32 v13, 3, v13
v_lshrrev_b32 v14, 4, v0
v_lshlrev_b32 v14, 5, v14
v_add3_u32 v{vRT}, v12, v13, v14
v_add_u32 v{vRT}, {ROWS}, v{vRT}""")
Z = T2
e(f"""v_mov_b32 v{Z}, 0
v_mov_b32 v{Z+1}, 0
v_mov_b32 v{Z+2}, 0
v_mov_b32 v{Z+3}, 0
v_bfe_u32 v12, v0, 4, 2
v_mul_u32_u24 v12, {U_PH}, v12
v_bfe_u32 v13, v0, 6, 1
v_mul_u32_u24 v13, {U_C1}, v13
v_lshrrev_b32 v14, 7, v0
v_mul_u32_u24 v14, {U_CH}, v14
v_add3_u32 v12, v12, v13, v14
v_and_b32 v14, 15, v0
v_lshl_add_u32 v12, v14, 4, v12
ds_write_b128 v12, {v(Z,4)}
v_bfe_u32 v12, v0, 1, 3
v_mul_u32_u24 v12, {KC_PH}, v12
v_and_b32 v13, 1, v0
v_lshl_add_u32 v12, v13, 4, v12
v_add_u32 v12, {KC}, v12
ds_write_b128 v12, {v(Z,4)}
v_mul_u32_u24 v13, {KS_CH}, v13
v_add_u32 v13, {KS}, v13
ds_write_b128 v13, {v(Z,4)}""")
e(f"v_lshlrev_b32 v12, 3, v0")
for i in range(12): e(f"v_add_u32 v{GI+i}, {i-4}, v12")
for i in range(12): e(f"v_cvt_f32_i32 v{GI+i}, v{GI+i}")
for i in range(6): e(f"v_cvt_pk_bf16_f32 v{P+i}, v{GI+2*i}, v{GI+2*i+1}")
for i in range(6): e(f"v_lshlrev_b32 v{GI+2*i}, 16, v{P+i}\nv_and_b32 v{GI+2*i+1}, 0xffff0000, v{P+i}")
for i in range(12): e(f"v_cvt_i32_f32 v{GI+i}, v{GI+i}")
e(f"s_mov_b32 s57, {KS + 16}")
for i in range(12): e(f"v_ashrrev_i32 v{KD+i}, 3, v{GI+i}")
for i in range(12): e(f"v_lshl_add_u32 v{GI+i}, v{KD+i}, 1, v{GI+i}")
for i in range(12): e(f"v_lshl_add_u32 v{GI+i}, v{GI+i}, 1, s57")
wk = nvm - n_kv
stamp(16)
if A.kg1pos == 3:
    e(f"s_waitcnt vmcnt({nvm-n_prm})")
    stamp(17)
    for x in kg1_list(): e(x)
    stamp(18)
e(f"s_waitcnt vmcnt({nvm-n_b1})")
stamp(27)
e("s_barrier")
stamp(1)
if A.kg1pos == 2:
    e(f"s_cmp_eq_u32 s{sWV}, 0\ns_cbranch_scc1 L_arr1")
    e(f"buffer_store_dword v12, v{vP16}, {DBR}, 0 offen offset:4080")
    e.label("L_arr1_ret")
    tail.label("L_arr1")
    arrive(0, tail)
    tail(f"s_branch L_arr1_ret")
    for x in kg1_list(): e(x)
    stamp(18)
    e(f"s_waitcnt vmcnt({wk+1})")
else:
    e(f"s_cmp_eq_u32 s{sWV}, 0\ns_cbranch_scc1 L_arr1")
    e(f"s_waitcnt vmcnt({wk})")
    e.label("L_arr1_ret")
    tail.label("L_arr1")
    arrive(0, tail)
    tail(f"s_waitcnt vmcnt({wk+1})\ns_branch L_arr1_ret")
if not A.s_early: ssmk_load()
e("s_barrier")
stamp(2)
KP = T
VP = P
SM = XF
W0 = YA; W1 = AD
for c in range(2):
    for b in range(3): e(f"ds_read_b64_tr_b16 {v(KP+6*c+2*b,2)}, v{vRT} offset:{ROW_K - ROWS + 4*b*RS + 512*c}")
for c in range(2):
    for b in range(2): e(f"ds_read_b64_tr_b16 {v(VP+4*c+2*b,2)}, v{vRT} offset:{ROW_V - ROWS + 4*b*RS + 512*c}")
e(f"s_mov_b32 s57, 0x03020504")
for c in range(2):
    r0, r1 = SHR + 2*c, SHR + 2*c + 1
    e(f"""v_alignbit_b32 v{SM+5*c}, v{r1}, v{r1}, 16
v_alignbit_b32 v{SM+5*c+1}, v{r0}, v{r0}, 16
v_and_b32 v{SM+5*c+2}, 0xffff0000, v{r1}
v_and_b32 v{SM+5*c+4}, 0xffff, v{r0}
v_perm_b32 v{SM+5*c+3}, v{r1}, v{r0}, s57""")
e("s_waitcnt lgkmcnt(4)" if not A.touch else "s_waitcnt lgkmcnt(0)")
for c in range(2):
    for t in range(8):
        if t & 1: e(f"v_dot2_f32_bf16 v{W0+8*c+t}, v{KP+6*c+(t+1)//2}, v{SM+5*c}, 0")
        else:     e(f"v_dot2_f32_bf16 v{W0+8*c+t}, v{KP+6*c+t//2}, v{SM+5*c+2}, 0")
for c in range(2):
    for t in range(8):
        if t & 1: e(f"v_dot2_f32_bf16 v{W0+8*c+t}, v{KP+6*c+(t+3)//2}, v{SM+5*c+1}, v{W0+8*c+t}")
        else:     e(f"v_dot2_f32_bf16 v{W0+8*c+t}, v{KP+6*c+t//2+1}, v{SM+5*c+3}, v{W0+8*c+t}")
e("s_waitcnt lgkmcnt(0)")
for c in range(2):
    for t in range(0, 8, 2):
        e(f"v_dot2_f32_bf16 v{W0+8*c+t}, v{KP+6*c+t//2+2}, v{SM+5*c+4}, v{W0+8*c+t}")
        e(f"v_lshlrev_b32 v{W1+8*c+t}, 16, v{VP+4*c+t//2}\nv_and_b32 v{W1+8*c+t+1}, 0xffff0000, v{VP+4*c+t//2}")
def t2(c, t): return T2 + 2*t + c
for c in range(2):
    for t in (1, 3, 5, 7, 0, 2, 4, 6): e(f"v_mul_f32 v{t2(c,t)}, v{W0+8*c+t}, v{W1+8*c+t}")
W = T
def pub(soff):
    for c in range(2):
        for f in range(4): e(f"v_cvt_pk_bf16_f32 v{W+4*c+f}, v{t2(c,f)}, v{t2(c,f+4)}")
        e(f"buffer_store_dwordx4 {v(W+4*c,4)}, v{vPB if c else vP16}, {WSR}, s{soff} offen sc1")
e(f"s_waitcnt vmcnt({4 if not A.s_early else nvm - n_b2 + (A.kg1pos == 2)})")
pub(sT8K)
stamp(21)
e(f"""s_add_u32 m0, s{sRSW}, {ROW_Q}
v_and_b32 v{S+1}, 63, v0
global_load_lds_dwordx4 v{S+2}, {sp(sQ)}
s_add_u32 m0, s{sRSW}, {ROW_Q + 4*RS}
v_lshlrev_b32 v{S+1}, 2, v{S+1}
global_load_lds_dwordx4 v{S+3}, {sp(sQ)}
global_load_ushort v{RAW+2}, v{S+5}, {sp(sSSMD)}
global_load_ushort v{RAW+3}, v{S+5}, {sp(sSSMD)} offset:512
global_load_ushort v{RAW}, v{S+5}, {sp(sDSK)}
global_load_ushort v{RAW+1}, v{S+5}, {sp(sDSK)} offset:512""")
if A.kg1pos < 2: params_load()
e(f"s_waitcnt vmcnt({15 if A.kg1pos < 2 else 8})")
stamp(3)
e(f"""v_cmp_eq_u32 vcc, 0, v0
s_and_saveexec_b64 s[62:63], vcc
v_mov_b32 v{EX}, 0
v_mov_b32 v{EX+1}, 0
v_mov_b32 v{EX+6}, 0
v_mov_b32 v{EX+7}, 0
s_mov_b64 exec, s[62:63]""")
e("s_call_b64 s[60:61], L_expand")
stamp(28)
e("s_call_b64 s[60:61], L_kfrag")
if not A.kstreamA: e("s_call_b64 s[60:61], L_kfrag2")
lab = L("nodbg")
e(f"s_cmp_lg_u32 s{sWV}, 0\ns_cbranch_scc1 {lab}")
e(f"buffer_load_dword v{S}, v{S+1}, {DBR}, 0 offen sc1")
e.label(lab)
e(f"v_mul_u32_u24 v12, 48, v0\nv_add_u32 v12, {GIDX}, v12")
for i in range(3): e(f"ds_write_b128 v12, {v(GI+4*i,4)} offset:{16*i}")
def unpackW():
    for c in range(2):
        for f in range(4): e(f"v_lshlrev_b32 v{t2(c,f)}, 16, v{W+4*c+f}\nv_and_b32 v{t2(c,f+4)}, 0xffff0000, v{W+4*c+f}")
stamp(4)
e(f"s_waitcnt vmcnt(0)")
lab = L("nodbg2")
e(f"s_cmp_lg_u32 s{sWV}, 0\ns_cbranch_scc1 {lab}")
dbg_check(S, S+1, 4, "d1")
e.label(lab)
e(f"s_add_u32 s{sCRECV}, s{sG32}, {B1}\ns_add_u32 s{sCPUB}, s{sG8K}, {B2}")
e("s_barrier")
stamp(29)
c_issue()
if not A.shared: e(f"buffer_load_dwordx4 {v(RC,4)}, v{vR1}, {WSR}, s{sCRECV} offen sc1")
if not A.b3pos: setm1(); fill(B3, sT8K)
if A.diag_nog: fill(B2, sG8K)
QP = KD
for c in range(2):
    for b in range(2): e(f"ds_read_b64_tr_b16 {v(QP+4*c+2*b,2)}, v{vRT} offset:{ROW_Q - ROWS + 4*b*RS + 512*c}")
e(f"s_mov_b32 s57, 0x05040100\ns_mov_b32 s58, 0x07060302")
e(f"v_lshlrev_b32 v{DM}, 16, v{RAW+2}\nv_lshlrev_b32 v{DM+1}, 16, v{RAW+3}")
e("s_waitcnt lgkmcnt(0)")
for t in range(8): e(f"v_perm_b32 v{P+t}, v{QP+4+t//2}, v{QP+t//2}, s{58 if t&1 else 57}")
for t in range(8): e(f"v_pk_mul_f32 {v(KD+2*t,2)}, {v(T2+2*t,2)}, {v(DM,2)}")
e(f"v_lshlrev_b32 v{DM}, 16, v{RAW}\nv_lshlrev_b32 v{DM+1}, 16, v{RAW+1}")
def pack(src):
    for t in range(8): e(f"v_cvt_pk_bf16_f32 v{P+t}, v{src+2*t}, v{src+2*t+1}")

def stage(off):
    for r in (vSTG, vSTG2):
        e(f"ds_write2st64_b32 v{r}, v{RC2}, v{RC2+1} offset0:{off} offset1:{off+5}")
        e(f"ds_write2st64_b32 v{r}, v{RC2+2}, v{RC2+3} offset0:{off+10} offset1:{off+15}")
class Sched:
    def __init__(self): self.q = 0; self.last = {}; self.slot = 0; self.done = -1
    def lds(self, text, tag=None):
        e(text); self.q += 1
        if tag is not None: self.last[tag] = self.q
    def need(self, tag):
        k = self.last[tag]
        if k > self.done:
            n = min(15, self.q - k)
            e(f"s_waitcnt lgkmcnt({n})"); self.done = self.q - n
    def drained(self): self.done = self.q
def kread(f, c, h): return f"ds_read_b64_tr_b16 {a((f*16+c)*4+2*h,2)}, v{vKF} offset:{f*KC_PH + 256*c + 32*(1-h)}"
def stage_s(sc, off):
    for r in (vSTG, vSTG2):
        sc.lds(f"ds_write2st64_b32 v{r}, v{RC2}, v{RC2+1} offset0:{off} offset1:{off+5}")
        sc.lds(f"ds_write2st64_b32 v{r}, v{RC2+2}, v{RC2+3} offset0:{off+10} offset1:{off+15}", "stg")
def run_part(sc, items, ahead, hooks=None, group=2, kstream=None, pre=None, gate=None, fill_list=None):
    hooks = dict(hooks or {})
    ks = list(kstream or [])
    reg = {}; nxt = [0]
    def issue(k):
        while nxt[0] < len(items) and nxt[0] < k + ahead:
            f, d, _ = items[nxt[0]]
            if d > 6 and not gate[0]: return
            r = UF + 4*(sc.slot % NUF); sc.slot += 1
            reg[nxt[0]] = r
            sc.lds(f"ds_read_b128 {v(r,4)}, v{vUF} offset:{f*U_PH + 64*(d+1)}", ("u", id(items), nxt[0]))
            nxt[0] += 1
            if k: return
    issue(0)
    if pre: pre()
    m = 0
    fl = list(fill_list or []); nm = sum(len(x[2]) for x in items); nfl = len(fl)
    for k, (f, d, ms) in enumerate(items):
        tags = [("u", id(items), k)]
        if k % group == 0 and k > 0: tags.append(("u", id(items), min(k + group - 1, nxt[0] - 1)))
        for kk in range(k, min(k + (group if k % group == 0 else 1), len(items))):
            for (acc, c, z) in items[kk][2]:
                if ("k", items[kk][0], c) in sc.last: tags.append(("k", items[kk][0], c))
        sc.need(max(tags, key=lambda t: sc.last[t]))
        for j, (acc, c, z) in enumerate(ms):
            assert not any(x[1] == f and x[2] == c for x in ks), "K fragment used before it is streamed"
            e(f"v_mfma_f32_16x16x32_bf16 {v(acc,4)}, {a((f*16+c)*4,4)}, {v(reg[k],4)}, {'0' if z else v(acc,4)}")
            n0 = len(e.lines)
            issue(k + 1)
            m += 1
            while ks and ks[0][0] <= m:
                _, f2, c2, h2_ = ks.pop(0)
                sc.lds(kread(f2, c2, h2_), ("k", f2, c2))
            for hk in hooks.pop(m, []): hk()
            used = len(e.lines) - n0
            want = nfl - (nfl * max(0, nm - A.fend - m)) // (nm - A.fend)
            while fl and ((nfl - len(fl) < want and used < 4) or used < 2):
                x = fl.pop(0); used += 1
                if x.startswith("ds_"): sc.lds(x)
                else: e(x)
    assert not hooks and not ks and not fl, (hooks, ks, fl)
KLOW = (8 + A.kdist, 6 + A.kdist)

def cvt_b(x): e(f"v_cvt_pk_bf16_f32 v{XP+2}, v{x+4}, v{x+5}\nv_cvt_pk_bf16_f32 v{XP+3}, v{x+6}, v{x+7}")
def swp(): e(f"v_permlane16_swap_b32 v{XP}, v{XP+2}\nv_permlane16_swap_b32 v{XP+1}, v{XP+3}")
def conv(kind):
    isA = kind == "A"
    kstream = A.kstreamA if isA else A.kstream
    if isA:
        def both(o=None):
            c_issue(o); (o or e)(f"buffer_load_dwordx4 {v(RC,4)}, v{vR1}, {WSR}, s{sCRECV} offen sc1")
        poll_check(both, list(range(RC2, RC2+4)) + list(range(RC, RC+4)), "c", 0 if A.b3pos else 2)
    else:
        poll_check(c_issue, range(RC2, RC2+4), "c", 2)
    rstamp(6, sLAYER, 2); cstamp(50); q(0)
    stage(0)
    if isA: setm1()
    if isA:
        for r in (vSTG, vSTG2):
            e(f"ds_write2st64_b32 v{r}, v{RC}, v{RC+1} offset0:2 offset1:7\nds_write2st64_b32 v{r}, v{RC+2}, v{RC+3} offset0:12 offset1:17")
    else:
        e(f"s_add_u32 s{sCRECV}, s{sCRECV}, {MB}")
    e(f"s_cmp_lg_u32 s{sTYPE}, 0\ns_waitcnt lgkmcnt(0)\ns_barrier\ns_cbranch_scc1 L_p1{kind}_1")
    for ty in range(2):
        Ra, Rb = ((0, 3), (1, 2))[ty]
        e.label(f"L_p1{kind}_{ty}")
        sc = Sched()
        q(1)
        def p1items(off, x, zero):
            return [(f, d + off, [(x+4, 2*Rb - d, zero and d == -1 and f == 0)] + ([(x, 2*Ra - d, zero and d == -1 and f == 0)] if d <= 2*Ra else []))
                    for d in range(-1, 2*Rb+1) for f in range(4)]
        items = p1items(0, X, True)
        items += [(f, d, [(X2, 2*(Ra+4) - d, d == 6 and f == 0), (X2+4, 2*(Rb+4) - d, d == 6 and f == 0)]) for d in range(6, -2, -1) for f in range(4)]
        items += p1items(8, X2, False)
        kst = [(40 + 8*g + 2*f + h + 1, f, KLOW[ty] + g, h) for g in range(8 - A.kdist) for f in range(4) for h in range(2)] if kstream else None
        gate = [isA]
        def hw(): sc.lds(f"ds_write_b128 v{vXW}, {v(XP,4)}", "xw")
        def h1():
            sc.need("xw"); e("s_barrier")
        def g2():
            sc.need("stg"); e("s_barrier"); gate[0] = True; q(4)
        def hr():
            e("s_mov_b64 exec, s[92:93]"); r_issue(); e("s_mov_b64 exec, -1")
        def one(t): return lambda: e(t)
        hk = {}
        def seq(pos, fns, step=1):
            for i, fn in enumerate(fns): hk.setdefault(pos + i*step, []).append(fn)
        cv = lambda d, x: one(f"v_cvt_pk_bf16_f32 v{d}, v{x}, v{x+1}")
        seq(34, [cv(XP, X), cv(XP+1, X+2)])
        seq(40, [lambda: q(2)])
        seq(43, [cv(XP+2, X+4), cv(XP+3, X+6), one(f"v_permlane16_swap_b32 v{XP}, v{XP+2}"), one(f"v_permlane16_swap_b32 v{XP+1}, v{XP+3}"), hw])
        seq(40 + A.bpos, [h1, lambda: sc.lds(f"ds_read_b128 {v(XP+4,4)}, v{vXR}", "xr")])
        def cz():
            e("s_waitcnt vmcnt(0)")
            if not isA: c_issue()
        def st(): sc.need("xr"); e(f"buffer_store_dwordx4 {v(XP+4,4)}, v{vP16}, {WSR}, s{sCPUB} offen sc1"); q(3)
        seq(40 + A.spos - 2, [cz]); seq(40 + A.spos, [st])
        if isA:
            fs = lambda buf, r: one(f"s_add_u32 s{sTMP}, s{sG8K}, {buf}\nbuffer_store_dwordx4 v[12:15], v{r}, {WSR}, s{sTMP} offen sc1")
            seq(40 + A.spos + 4, [fs(B4, vP16), fs(B4, vPB), fs(B6, vP16), fs(B6, vPB)], A.fstep)
            ft = lambda r: one(f"s_add_u32 s{sTMP}, s{sT8K}, {B3}\nbuffer_store_dwordx4 v[12:15], v{r}, {WSR}, s{sTMP} offen sc1")
            if A.b3pos: seq(A.b3pos, [ft(vP16), ft(vPB)], 3)
            seq(90, [lambda: q(4)])
        else:
            stw = []
            for r_ in (vSTG, vSTG2):
                stw.append(lambda r_=r_: sc.lds(f"ds_write2st64_b32 v{r_}, v{RC2}, v{RC2+1} offset0:2 offset1:7"))
                stw.append(lambda r_=r_: sc.lds(f"ds_write2st64_b32 v{r_}, v{RC2+2}, v{RC2+3} offset0:12 offset1:17", "stg"))
            seq(40 + A.gpos, poll_steps(c_issue, range(RC2, RC2+4), f"h{ty}", 1) + stw)
            seq(40 + A.gpos + 9, [g2])
        seq(104 + A.rpos, [hr])
        seq(136, [cv(XP, X2), cv(XP+1, X2+2)])
        run_part(sc, items, 6, hk, kstream=kst, gate=gate, group=A.grp, fill_list=kg1_list() if (isA and A.kgconv) else None)
        q(5)
        e(f"""s_lshl_b32 s57, s{sLAYER}, 22
s_add_u32 s{sRPUB}, s57, s{sT8K}
s_add_u32 s{sRPUB}, s{sRPUB}, {B3}
s_add_u32 s{sCRECV}, s57, s{sG32}
s_add_u32 s{sCRECV}, s{sCRECV}, {B3}
s_add_u32 s{sCPUB}, s{sCPUB}, 4096""")
        cvt_b(X2); swp(); hw()
        if ty == 0: e(f"s_branch L_ctail{kind}")
    e.label(f"L_ctail{kind}")
    e(f"""s_waitcnt lgkmcnt(0)
s_barrier
ds_read_b128 {v(XP+4,4)}, v{vXR}
s_waitcnt lgkmcnt(0)
buffer_store_dwordx4 {v(XP+4,4)}, v{vP16}, {WSR}, s{sCPUB} offen sc1""")
    cstamp(51)
    if A.stamps == 5:
        q(6)
        e(f"s_waitcnt lgkmcnt(0)\ns_lshl_b32 s58, s{sLAYER}, 3\ns_add_u32 s58, s58, 36")
        for i in range(7): e(f"s_add_u32 m0, s58, {i}\ns_nop 0\nv_writelane_b32 v{vSTAMP}, s{32+2*i}, m0")
    rstamp(7, sLAYER, 2)
    e(f"""s_add_u32 s{sCPUB}, s57, s{sG8K}
s_add_u32 s{sCPUB}, s{sCPUB}, {B4}
s_add_u32 s{sLAYER}, s{sLAYER}, 1""")

def ln(hook=None, st=0, hook2=None, dst=T2):
    for t in range(8): e(f"v_dot2_f32_bf16 v{T+t}, v{P+t}, {ONES}, 0")
    for t in range(8): e(f"v_dot2_f32_bf16 v{T+8+t}, v{P+t}, v{P+t}, 0")
    for i in range(8): e(f"v_add_f32_dpp v{T+i}, v{T+i}, v{T+i} row_shl:8 row_mask:0xf bank_mask:0x3")
    for i in range(8): e(f"v_add_f32_dpp v{T+i}, v{T+8+i}, v{T+8+i} row_shr:8 row_mask:0xf bank_mask:0xc")
    for i in range(4): e(f"v_add_f32_dpp v{T+i}, v{T+i}, v{T+i} row_shl:4 row_mask:0xf bank_mask:0x5")
    for i in range(4): e(f"v_add_f32_dpp v{T+i}, v{T+4+i}, v{T+4+i} row_shr:4 row_mask:0xf bank_mask:0xa")
    unp = []
    for t in range(8):
        unp.append(f"v_lshlrev_b32 v{XF+2*t}, 16, v{P+t}")
        unp.append(f"v_and_b32 v{XF+2*t+1}, 0xffff0000, v{P+t}")
    def U(n):
        for _ in range(n):
            if unp: e(unp.pop(0))
    U(1)
    e(f"v_permlane16_swap_b32 v{T}, v{T+2}\nv_permlane16_swap_b32 v{T+1}, v{T+3}")
    e(f"v_add_f32 v{T}, v{T}, v{T+2}\nv_add_f32 v{T+1}, v{T+1}, v{T+3}")
    U(2)
    e(f"v_permlane32_swap_b32 v{T}, v{T+1}\nv_add_f32 v{T}, v{T}, v{T+1}")
    U(2)
    e(f"v_add_f32_dpp v{T}, v{T}, v{T} quad_perm:[1,0,3,2] row_mask:0xf bank_mask:0xf")
    U(2)
    e(f"v_add_f32_dpp v{T}, v{T}, v{T} quad_perm:[2,3,0,1] row_mask:0xf bank_mask:0xf")
    e(f"ds_write_b32 v{vRW}, v{T}")
    U(9)
    if hook: hook()
    if st: stamp(st)
    e(f"s_waitcnt lgkmcnt(0)\ns_barrier")
    if st: stamp(st+1)
    e(f"ds_read_b128 {v(T,4)}, v{vRR}\nds_read_b128 {v(T+4,4)}, v{vRR} offset:16")
    e(f"v_xor_b32 v{vRW}, 256, v{vRW}\nv_xor_b32 v{vRR}, 256, v{vRR}")
    e(f"""s_waitcnt lgkmcnt(1)
v_add_f32 v{T}, v{T}, v{T+1}
v_add_f32 v{T+2}, v{T+2}, v{T+3}
s_waitcnt lgkmcnt(0)
v_add_f32 v{T+4}, v{T+4}, v{T+5}
v_add_f32 v{T+6}, v{T+6}, v{T+7}
v_add_f32 v{T}, v{T}, v{T+2}
v_add_f32 v{T+4}, v{T+4}, v{T+6}
v_mul_f32 v{T}, s{sINV}, v{T}
v_mul_f32 v{T+4}, s{sINV}, v{T+4}
v_fma_f32 v{T+4}, -v{T}, v{T}, v{T+4}
v_max_f32 v{T+4}, 0, v{T+4}
""")
    if A.faststats:
        e(f"""v_add_f32 v{T+4}, 0x3727c5ac, v{T+4}
v_rsq_f32 v13, v{T+4}
v_mul_f32_e64 v12, -v{T}, v13""")
    else:
        e(f"""v_cvt_pk_bf16_f32 v{T}, v{T}, v{T+4}
v_and_b32 v{T+4}, 0xffff0000, v{T}
v_lshlrev_b32 v12, 16, v{T}
v_add_f32 v{T+4}, 0x3727c5ac, v{T+4}
v_cvt_pk_bf16_f32 v{T+4}, v{T+4}, v{T+4}
v_and_b32 v{T+4}, 0xffff0000, v{T+4}
v_sqrt_f32 v{T+4}, v{T+4}
v_cvt_pk_bf16_f32 v{T+4}, v{T+4}, v{T+4}
v_and_b32 v{T+4}, 0xffff0000, v{T+4}
v_rcp_f32 v13, v{T+4}
v_mul_f32_e64 v12, -v12, v13""")
    if hook2: hook2()
    if st: stamp(35)
    for t in range(8): e(f"v_readlane_b32 s{sBC+2*t}, v13, {t}\nv_readlane_b32 s{sBC+2*t+1}, v12, {t}")
    for t in range(8): e(f"v_pk_fma_f32 {v(dst+2*t,2)}, {v(XF+2*t,2)}, {sp(sBC+2*t)}, {sp(sBC+2*t)} op_sel:[0,0,1] op_sel_hi:[1,0,1]")
def postpub():
    for t in range(8): e(f"v_pk_fma_f32 {v(AD+2*t,2)}, {v(T2+2*t,2)}, {v(DM,2)}, {v(XF+2*t,2)}")
def hi_cpoll():
    lab = L("hc")
    e(f"s_cmp_eq_u32 s{sROLE}, 0\ns_cbranch_scc1 {lab}")
    c_issue()
    e.label(lab)
def addc():
    for t in range(8):
        for c in range(2): e(f"v_dot2_f32_bf16 v{T+2*t+c}, v{RC+4*c+t//2}, {SELHI if t&1 else SELLO}, v{AD+2*t+c}")
    pack(T)
ln(dst=AD)
e(f"s_mov_b32 s{sLAYER}, 0\ns_add_u32 s{sRRECV}, s{sT32}, {B2}")
e(f"s_cmp_eq_u32 s{sROLE}, 0\ns_cselect_b64 s[92:93], -1, 0\ns_cselect_b64 s[90:91], 0, -1")
stamp(5)
if A.shared:
    e("s_branch L_conv")
    e.label("L_s2")
    setm1(); fill(B4, sG8K); fill(B6, sG8K)
else: conv("A")
e(f"s_cmp_eq_u32 s{sROLE}, 0\ns_cbranch_scc1 L_r2")
e("s_call_b64 s[60:61], L_kg2")
e("s_waitcnt vmcnt(0)")
e.label("L_r2")
poll_check(r_issue, range(RC, RC+8), "r2", 5 if A.shared else 1)
stamp(22)
for t in range(8):
    for c in range(2): e(f"v_dot2_f32_bf16 v{YA+2*t+c}, v{RC+4*c+t//2}, {SELHI if t&1 else SELLO}, v{KD+2*t+c}")
for t in range(8): e(f"v_pk_fma_f32 {v(T+2*t,2)}, {v(AD+2*t,2)}, {v(YA+2*t,2)}, {v(XF+2*t,2)}")
pack(T)
ln()
if A.shared: e("s_waitcnt vmcnt(0)")
pub(sRPUB)
stamp(23)
hi_cpoll()
e(f"s_add_u32 s{sRRECV}, s{sRRECV}, {4*MB}")
setm1(); fill(B5, sT8K)
postpub()
lab = L("s3hi")
e(f"s_cmp_lg_u32 s{sROLE}, 0\ns_cbranch_scc1 {lab}")
e("s_call_b64 s[60:61], L_kg2")
e("s_call_b64 s[60:61], L_kfrag")
e("s_waitcnt vmcnt(0)\ns_branch L_s3j")
e.label(lab)
e("s_call_b64 s[60:61], L_kfrag")
e.label("L_s3j")
if not A.kstream: e("s_call_b64 s[60:61], L_kfrag2")
stamp(19)
e("s_waitcnt lgkmcnt(0)")
e.label("L_conv")
conv("B")
if A.shared: e(f"s_cmp_eq_u32 s{sLAYER}, 1\ns_cbranch_scc1 L_s2")
lab = L("nosl")
e(f"s_cmp_eq_u32 s{sROLE}, 0\ns_cbranch_scc1 {lab}")
e(f"s_sleep {A.sl_r_hi}")
r_issue()
e("s_waitcnt vmcnt(0)")
e.label(lab)
e(f"s_cmp_eq_u32 s{sLAYER}, 3\ns_cbranch_scc1 L_r6")
poll_check(r_issue, range(RC, RC+8), "r4", 1)
stamp(24)
addc()
ln()
for t in range(8): e(f"v_pk_fma_f32 {v(T+2*t,2)}, {v(T2+2*t,2)}, {v(YA+2*t,2)}, {v(XF+2*t,2)}")
pack(T)
ln(hi_cpoll if A.cpos == 0 else None, hook2=hi_cpoll if A.cpos == 1 else None)
pub(sRPUB)
stamp(25)
e(f"s_add_u32 s{sRRECV}, s{sRRECV}, {4*MB}")
postpub()
e(f"s_cmp_lg_u32 s{sROLE}, 0\ns_cbranch_scc1 L_conv")
e(f"s_sleep {A.sl_c_lo}")
c_issue()
e("s_waitcnt vmcnt(0)")
e("s_branch L_conv")

e.label("L_kg2")
if not A.kgconv:
    if A.kg1twice:
        e("s_mov_b32 s7, 0"); e.label("L_again"); e("s_memtime s[32:33]")
    for i_, x in enumerate(kg1_list()):
        e(x)
        if i_ == A.kgr: e("s_mov_b64 exec, s[90:91]"); r_issue(); e("s_mov_b64 exec, -1")
    if A.kg1twice:
        e(f"s_memtime s[34:35]\ns_add_u32 m0, s7, 36\ns_waitcnt lgkmcnt(0)\ns_sub_u32 s34, s34, s32\nv_writelane_b32 v{vSTAMP}, s34, m0\ns_add_u32 s7, s7, 1\ns_cmp_lt_u32 s7, 3\ns_cbranch_scc1 L_again")
    stamp(18)
e(f"""s_lshr_b32 s56, s{sWV}, 1
s_mul_i32 s57, s56, {TBL_CH}
s_add_u32 s57, s57, {TBL}
v_and_b32 v12, 15, v0
v_bfe_u32 v13, v0, 4, 2
v_mul_u32_u24 v14, {TS}, v12
v_lshl_add_u32 v14, v13, 4, v14
v_add_u32 v14, s57, v14
s_mul_i32 s58, s{sTYPE}, {16*TS}
v_add_u32 v15, s58, v14
s_waitcnt lgkmcnt(0)
s_barrier""")
GA, GB, GD = 148, 212, 244
SA = T
def kp(l): return 2 * (l + 2 * (l >> 3))
pre = f"""s_mul_i32 s57, s56, {KS_CH}
s_mul_i32 s58, s{sTYPE}, {16*20}
s_add_u32 s57, s57, s58
s_add_u32 s57, s57, {KS + 16}
v_mul_u32_u24 v12, 20, v12
v_add_u32 v12, s57, v12
v_cmp_eq_u32 vcc, 1, v13
v_cmp_eq_u32 s[62:63], 2, v13
v_mov_b32 v{SA+4}, {kp(256)}
v_mov_b32 v{SA+5}, {kp(512)}
v_cndmask_b32 v{SA}, 0, 8, vcc
v_cmp_eq_u32 vcc, 3, v13
v_cndmask_b32 v{SA}, v{SA}, v{SA+4}, s[62:63]
v_cndmask_b32 v{SA+1}, 2, 4, s[62:63]
v_cndmask_b32 v{SA+2}, 4, 8, s[62:63]
v_cndmask_b32 v{SA}, v{SA}, v{SA+5}, vcc
v_cndmask_b32 v{SA+1}, v{SA+1}, 8, vcc
v_cndmask_b32 v{SA+2}, v{SA+2}, v{SA+4}, vcc
v_add_u32 v{SA}, v{SA}, v12
v_add_u32 v{SA+3}, v{SA+1}, v{SA+2}
v_add_u32 v{SA+1}, v{SA+1}, v{SA}
v_add_u32 v{SA+2}, v{SA+2}, v{SA}
v_add_u32 v{SA+3}, v{SA+3}, v{SA}
v_mul_u32_u24 v{SA+4}, {kp(1024)}, v13
v_add_u32 v{SA+4}, v{SA+4}, v12
v_mul_u32_u24 v{SA+5}, 48, v0
v_add_u32 v{SA+5}, {GIDX}, v{SA+5}""".split("\n")
def kgrd(s_):
    e(f"ds_read_b128 {v(GB+4*s_,4)}, v15 offset:{64*s_}")
    e(f"ds_read_b128 {v(GA+8*s_,4)}, v14 offset:{TA_OFF + 64*s_}")
    e(f"ds_read_b128 {v(GA+8*s_+4,4)}, v14 offset:{TA_OFF + 16*TS + 64*s_}")
for s_ in range(4): kgrd(s_)
for x in pre: e(x)
for k in range(8):
    e(f"s_waitcnt lgkmcnt({min(9, 3*(7-k))})")
    for tl in range(2): e(f"v_mfma_f32_16x16x32_bf16 {v(GD+4*tl,4)}, {v(GA+8*k+4*tl,4)}, {v(GB+4*k,4)}, {'0' if k==0 else v(GD+4*tl,4)}")
    if k + 4 < 8: kgrd(k + 4)
GI2 = 148
for i in range(3): e(f"ds_read_b128 {v(GI2+4*i,4)}, v{SA+5} offset:{16*i}")
for i in range(4): e(f"v_cvt_pk_bf16_f32 v{GB+i}, v{GD+2*i}, v{GD+2*i+1}")
e(f"""ds_write_b16 v{SA}, v{GB}
ds_write_b16_d16_hi v{SA+1}, v{GB}
ds_write_b16 v{SA+2}, v{GB+1}
ds_write_b16_d16_hi v{SA+3}, v{GB+1}
s_mov_b32 exec_hi, 0
ds_write_b16 v{SA+4}, v{GB+2} offset:{kp(1024)}
s_mov_b32 exec_lo, 0xffff
ds_write_b16_d16_hi v{SA+4}, v{GB+2} offset:{kp(1280)}
ds_write_b16 v{SA+4}, v{GB+3} offset:{kp(1536)}
ds_write_b16_d16_hi v{SA+4}, v{GB+3} offset:{kp(1792)}
s_mov_b64 exec, -1""")
if A.kgconv: e("s_mov_b64 exec, s[90:91]"); r_issue()
e("s_mov_b64 exec, s[92:93]"); c_issue(); e("s_mov_b64 exec, -1")
e("s_waitcnt lgkmcnt(0)\ns_barrier")
GV = 216
for c in range(2):
    for i in range(12): e(f"ds_read_u16 v{GV+12*c+i}, v{GI2+i} offset:{c*KS_CH}")
for c in range(2):
    e(f"s_waitcnt lgkmcnt({12 if c==0 else 0})")
    for i in range(6): e(f"v_lshl_or_b32 v{EX+6*c+i}, v{GV+12*c+2*i+1}, 16, v{GV+12*c+2*i}")
e.label("L_expand")
e(f"v_add_u32 v12, {KC + 32}, v{vP16}")
for c in range(2):
    E0 = EX + 6*c
    ETc = ET if c == 0 else G + 20
    for i in range(4): e(f"v_alignbit_b32 v{ETc+i}, v{E0+2+i}, v{E0+1+i}, 16")
    for i in range(4): e(f"v_mov_b32 v{ETc+4+i}, v{E0+1+i}")
    for i in range(4): e(f"v_alignbit_b32 v{ETc+8+i}, v{E0+1+i}, v{E0+i}, 16")
    e(f"ds_write_b128 v12, {v(E0+2,4)} offset:{c*KC_CH}")
    for f in range(1, 4): e(f"ds_write_b128 v12, {v(ETc+4*(f-1),4)} offset:{c*KC_CH + f*KC_PH}")
e("s_setpc_b64 s[60:61]")
e.label("L_kfrag")
e("s_waitcnt lgkmcnt(0)\ns_barrier")
def kfr(c0, c1, cskip, end):
    for c in range(c0, c1):
        if c == cskip: e(f"s_cmp_lg_u32 s{sTYPE}, 0\ns_cbranch_scc1 {end}")
        for f in range(4):
            for h in range(2): e(kread(f, c, h))
kfr(0, KLOW[0], KLOW[1], "L_kfrag_end")
e.label("L_kfrag_end")
e("s_setpc_b64 s[60:61]")
if not (A.kstream and A.kstreamA):
    e.label("L_kfrag2")
    e(f"s_cmp_eq_u32 s{sTYPE}, 0\ns_cbranch_scc1 L_kfrag2_a")
    kfr(KLOW[1], KLOW[0], -1, None)
    e.label("L_kfrag2_a")
    kfr(KLOW[0], 16, 14, "L_kfrag2_end")
    e.label("L_kfrag2_end")
    e("s_setpc_b64 s[60:61]")

e.label("L_r6")
e(f"""s_mov_b32 s8, s{sOUT}
s_mov_b32 s9, s{sOUT+1}
s_add_u32 s57, s{sT8K}, 4096""")
if A.outdw:
    e(f"""v_and_b32 v13, 1, v0
v_mul_u32_u24 v14, 510, v13
v_lshl_add_u32 v14, v0, 1, v14
v_mov_b32 v15, 0x05040100
v_mov_b32 v{T2}, 0x03020706
v_cmp_eq_u32 vcc, 1, v13
v_cndmask_b32 v15, v15, v{T2}, vcc""")
else:
    e("v_lshlrev_b32 v14, 1, v0")
poll_check(r_issue, range(RC, RC+8), "r6", 1)
stamp(26)
addc()
if A.outdw:
    for t in range(8): e(f"v_mov_b32_dpp v{T2+t}, v{P+t} quad_perm:[1,0,3,2] row_mask:0xf bank_mask:0xf")
    for t in range(8):
        so = f"s{sT8K}" if t < 4 else "s57"
        e(f"v_perm_b32 v{T2+t}, v{T2+t}, v{P+t}, v15")
        e(f"buffer_store_dword v{T2+t}, v14, {KSR}, {so} offen offset:{(t&3)*1024} {A.outmod}")
else:
    for t in range(8):
        so = f"s{sT8K}" if t < 4 else "s57"
        e(f"buffer_store_short v{P+t}, v14, {KSR}, {so} offen offset:{(t&3)*1024} {A.outmod}")
        e(f"buffer_store_short_d16_hi v{P+t}, v14, {KSR}, {so} offen offset:{(t&3)*1024+512} {A.outmod}")
if A.stamps:
    stamp(30)
    e(f"""s_waitcnt vmcnt(0)""")
    stamp(31)
    e(f"s_memtime s[86:87]\ns_waitcnt lgkmcnt(0)\nv_writelane_b32 v{vSTAMP}, s86, 33")
    e(f"v_writelane_b32 v{vSTAMP}, s94, 34\nv_writelane_b32 v{vSTAMP}, s95, 35")
    e(f"""s_lshl_b32 s57, s2, 10
s_add_u32 s57, s57, {STAMP_OFF}
v_lshlrev_b32 v12, 2, v0
buffer_store_dword v{vSTAMP}, v12, {WSR}, s57 offen""")
if A.echo >= 0:
    e(f"""v_readlane_b32 s57, v{vSTAMP}, 0
v_readlane_b32 s58, v{vSTAMP}, {A.echo}
v_readlane_b32 s59, v{vSTAMP}, 31
s_nop 3
s_sub_u32 s58, s58, s57
s_add_u32 s59, s59, s58""")
    e.label("L_echo")
    e("""s_memrealtime s[86:87]
s_waitcnt lgkmcnt(0)
s_sub_u32 s57, s86, s59
s_cmp_lt_i32 s57, 0
s_cbranch_scc1 L_echo""")
e.label("L_exit")
e("s_endpgm")
e.lines += tail.lines
e.label("L_end")
e("s_endpgm")

lines, nn = fix_hazards(e.lines)
if A.align:
    lines, np_, na = align_runs(lines)
hdr = open(f"cdna_kernels/{NAME}.s.ref").read().split("; @launch")[0]
out = hdr + f"; @launch grid=(256,1,1) block=(256,1,1) lds={LDS_SIZE}\n"
out += f""".amdgcn_target "amdgcn-amd-amdhsa--gfx950"
.text
.globl {NAME}_kernel
.p2align 8
.type {NAME}_kernel,@function
{NAME}_kernel:
""" + "\n".join(lines) + f"""
.section .rodata,"a"
.p2align 6
.amdhsa_kernel {NAME}_kernel
  .amdhsa_next_free_vgpr 512
  .amdhsa_next_free_sgpr 96
  .amdhsa_accum_offset 256
  .amdhsa_group_segment_fixed_size 0
  .amdhsa_kernarg_size 144
  .amdhsa_user_sgpr_count 2
  .amdhsa_user_sgpr_kernarg_segment_ptr 1
  .amdhsa_system_sgpr_workgroup_id_x 1
.end_amdhsa_kernel
"""
open(A.o, "w").write(out)
print(f"wrote {A.o}: {len(lines)} lines, {nn} nop states inserted", file=sys.stderr)
```
